```python
import torch

def _softmax(x, axis=-1):
    return torch.softmax(x, dim=axis)
def _gelu(x):
    return torch.nn.functional.gelu(x, approximate="tanh")
def _silu(x):
    return torch.nn.functional.silu(x)
def _sigmoid(x):
    return torch.sigmoid(x)
def _layernorm(x, axis=-1, eps=1e-5):
    m = x.mean(dim=axis, keepdim=True)
    v = x.var(dim=axis, keepdim=True, unbiased=False)
    return (x - m) / torch.sqrt(v + eps)
def _scatter_add(tgt, idx, src, axis=0):
    return tgt.clone().index_add_(axis, idx, src)
def _segment_sum(src, seg, n):
    out = torch.zeros((n,) + src.shape[1:], dtype=src.dtype)
    return out.index_add_(0, seg, src)
def _pad(x, pw):
    flat = tuple(v for pair in reversed(pw) for v in pair)
    return torch.nn.functional.pad(x, flat)

kernel_name = 'recurrent_scan__ssm_conv_s4d__mixer_channel_mlp__prompt'

def setup_inputs():

    _w = (lambda a: (lambda t: t.to(torch.bfloat16) if t.is_floating_point() else t)(torch.as_tensor(a)))
    def _A_setup():
        Bsz, L, D, N = 1, 2048, 512, 128
        return {
            "u": _w((lambda *s: torch.randn(*s, dtype=torch.bfloat16) * 0.05)(Bsz, L, D)),
            "log_A_real": _w((lambda *s: torch.randn(*s, dtype=torch.bfloat16) * 3.2)(D, N) * 0.5),
            "A_imag": _w((lambda *s: torch.randn(*s, dtype=torch.bfloat16) * 0.2)(D, N) * 3.14),
            "C_real": _w((lambda *s: torch.randn(*s, dtype=torch.bfloat16) * 0.8)(D, N) / N ** 0.5),
            "C_imag": _w((lambda *s: torch.randn(*s, dtype=torch.bfloat16) * 0.8)(D, N) / N ** 0.5),
            "log_dt": _w((lambda *s: torch.randn(*s, dtype=torch.bfloat16) * 0.2)(D) * 0.5 - 4.0),
            "D_skip": _w((lambda *s: torch.randn(*s, dtype=torch.bfloat16) * 0.2)(D)),
        }
    _A_in = _A_setup()

    def _B_setup():
        B, S, D, F = 1, 2048, 512, 1376
        return {
            "x": _w((lambda *s: torch.randn(*s, dtype=torch.bfloat16) * 0.05)(B, S, D)),
            "w1": _w((lambda *s: torch.randn(*s, dtype=torch.bfloat16) * 1.6)(D, F) * (D ** -0.5)),
            "b1": _w((lambda *s: torch.randn(*s, dtype=torch.bfloat16) * 0.8)(F)),
            "w2": _w((lambda *s: torch.randn(*s, dtype=torch.bfloat16) * 0.1)(F, D) * (F ** -0.5)),
            "b2": _w((lambda *s: torch.randn(*s, dtype=torch.bfloat16) * 0.1)(D)),
        }
    _B_in = _B_setup()

    return {
        "A_u": _A_in["u"],
        "A_log_A_real": _A_in["log_A_real"],
        "A_A_imag": _A_in["A_imag"],
        "A_C_real": _A_in["C_real"],
        "A_C_imag": _A_in["C_imag"],
        "A_log_dt": _A_in["log_dt"],
        "A_D_skip": _A_in["D_skip"],
        "B_x": _B_in["x"],
        "B_w1": _B_in["w1"],
        "B_b1": _B_in["b1"],
        "B_w2": _B_in["w2"],
        "B_b2": _B_in["b2"],
    }

def reference(A_u, A_log_A_real, A_A_imag, A_C_real, A_C_imag, A_log_dt, A_D_skip, B_x, B_w1, B_b1, B_w2, B_b2):
    def _A_ref(u, log_A_real, A_imag, C_real, C_imag, log_dt, D_skip):
        L = u.shape[1]
        dt = torch.exp(log_dt)
        A = -torch.exp(log_A_real) + 1j * A_imag
        C = (C_real + 1j * C_imag) * dt[:, None]
        pos = (lambda x, dt: x.to(dt))(torch.arange(L), log_dt.dtype)
        P = torch.exp((A * dt[:, None])[:, :, None] * pos[None, None, :])
        K = 2.0 * torch.einsum("dn,dnl->dl", C, P).real
        L2 = 2 * L
        u_t = (lambda x, *d: x.permute(*d))(u, 0, 2, 1)
        Kf = (lambda x, *a, **k: torch.fft.rfft(x.float(), *a, **k))(K, L2)
        Uf = (lambda x, *a, **k: torch.fft.rfft(x.float(), *a, **k))(u_t, L2)
        y = (lambda x, *a, **k: torch.fft.irfft(x, *a, **k).to(torch.bfloat16))(Uf * Kf[None, :, :], L2)[:, :, :L]
        y = (lambda x, *d: x.permute(*d))(y, 0, 2, 1)
        return y + u * D_skip[None, None, :]

    def _B_ref(x, w1, b1, w2, b2):
        y = _layernorm(x, axis=-1)
        h = _gelu(torch.einsum("bsd,df->bsf", y, w1) + b1)
        return torch.einsum("bsf,fd->bsd", h, w2) + b2

    x = A_u
    xn = _layernorm(x, axis=-1)
    s = _A_ref(xn, A_log_A_real, A_A_imag, A_C_real, A_C_imag, A_log_dt, A_D_skip)
    g = _silu(_B_ref(xn, B_w1, B_b1, B_w2, B_b2))
    return x + s * g
```

```python
import re

TRANS = re.compile(r"^v_(exp|log|rcp|rsq|sqrt|sin|cos)_(f32|f16|legacy_f32|iflag_f32)")
REG = re.compile(r"^[-|]*([vsa])(\d+|\[(\d+):(\d+)\])\|?$")

def regs_of(tok):
    tok = tok.strip()
    if tok in ("vcc", "vcc_lo", "vcc_hi"): return {("s", "vcc")}
    if tok in ("exec", "exec_lo", "exec_hi"): return {("s", "exec")}
    if tok == "m0": return {("s", "m0")}
    m = REG.match(tok)
    if not m: return set()
    k = m.group(1)
    if m.group(3) is not None:
        return {(k, i) for i in range(int(m.group(3)), int(m.group(4)) + 1)}
    return {(k, int(m.group(2)))}

class Ins:
    __slots__ = ("text", "mn", "ops", "cls", "rd", "wr", "states", "passes", "srcc", "srcab", "dpp", "lds", "stdata", "label")
    def __init__(self, text):
        self.text = text
        self.label = False
        t = text.split(";")[0].strip()
        self.rd = set(); self.wr = set(); self.states = 1; self.passes = 0
        self.srcc = set(); self.srcab = set(); self.dpp = False; self.lds = False; self.stdata = set()
        if not t or t.startswith(".") or t.endswith(":"):
            self.cls = "none"; self.mn = ""; self.ops = []; self.states = 0
            self.label = t.endswith(":")
            return
        p = t.split(None, 1)
        self.mn = mn = p[0]
        rest = p[1] if len(p) > 1 else ""
        ops = []; cur = ""; depth = 0
        for ch in rest:
            if ch == "[": depth += 1
            if ch == "]": depth -= 1
            if ch == "," and depth == 0: ops.append(cur.strip()); cur = ""
            else: cur += ch
        if cur.strip(): ops.append(cur.strip())
        mods = ""
        if ops:
            last = ops[-1].split(None, 1)
            ops[-1] = last[0]
            if len(last) > 1: mods = last[1]
        self.ops = ops
        R = [regs_of(o) for o in ops]
        allr = lambda lst: set().union(*lst) if lst else set()
        if mn.startswith("v_mfma"):
            self.cls = "mfma"
            self.passes = 8 if "32x32" in mn else 4
            self.wr = R[0]; self.srcab = R[1] | R[2]; self.srcc = R[3]; self.rd = self.srcab | self.srcc
        elif mn.startswith("v_"):
            self.cls = "valu"
            self.dpp = "_dpp" in mn
            if mn.startswith("v_permlane") and "swap" in mn:
                self.wr = R[0] | R[1]; self.rd = R[0] | R[1]
            elif mn.startswith("v_nop"):
                pass
            else:
                self.wr = R[0]; self.rd = allr(R[1:])
                if re.match(r"v_(fmac|dot2c|writelane|pk_fmac)", mn) or self.dpp: self.rd |= R[0]
                if mn.startswith("v_cndmask") and len(ops) == 3: self.rd |= {("s", "vcc")}
                if re.match(r"v_(add|sub|subrev)_co_u32", mn): self.wr |= R[1]; self.rd = allr(R[2:])
                if re.match(r"v_(addc|subb)_co_u32", mn): self.wr |= R[1]; self.rd = allr(R[2:])
        elif mn.startswith("buffer_") or mn.startswith("global_"):
            self.cls = "vmem"
            self.lds = (" lds" in " " + mods) or "_lds_" in mn
            if mn.startswith("buffer_wbl2") or mn.startswith("buffer_inv"):
                pass
            elif "load" in mn and not self.lds:
                self.wr = R[0]; self.rd = allr(R[1:])
            elif "load" in mn:
                self.rd = allr(R) | {("s", "m0")}
            else:
                self.rd = allr(R)
                if "x4" in mn or "x3" in mn:
                    self.stdata = R[0] if mn.startswith("buffer_") else R[1]
        elif mn.startswith("ds_"):
            self.cls = "ds"
            if "read" in mn or "rtn" in mn or "permute" in mn or "swizzle" in mn:
                self.wr = R[0]; self.rd = allr(R[1:])
            else:
                self.rd = allr(R)
        elif mn == "s_nop":
            self.cls = "nop"; self.states = int(ops[0], 0) + 1
        elif mn.startswith("s_load") or mn.startswith("s_mem"):
            self.cls = "smem"; self.wr = R[0]; self.rd = allr(R[1:])
        elif mn.startswith("s_"):
            self.cls = "salu"
            if re.match(r"s_(waitcnt|barrier|branch|cbranch|sleep|setprio|endpgm|cmp|bitcmp)", mn):
                self.rd = allr(R)
            else:
                self.wr = R[0] if R else set(); self.rd = allr(R[1:])
        else:
            raise ValueError("unknown instr " + text)

def vg(s): return {r for r in s if r[0] in "va"}
def sg(s): return {r for r in s if r[0] == "s"}

def need(p, c):
    n = 0
    if p.cls == "valu":
        pw = vg(p.wr); ps = sg(p.wr)
        if c.cls == "mfma" and pw & c.rd: n = max(n, 2)
        if c.cls == "valu":
            if c.dpp and pw & c.rd: n = max(n, 2)
            if c.mn.startswith("v_permlane") and pw & c.rd: n = max(n, 2)
            if re.match(r"v_read(first)?lane", c.mn) and pw & c.rd: n = max(n, 1)
            if TRANS.match(p.mn) and pw & c.rd: n = max(n, 1)
            if ps & c.rd: n = max(n, 4 if re.match(r"v_(read|write)lane", c.mn) else 2)
            if "_sdwa" in p.mn and pw & (c.rd | c.wr): n = max(n, 1)
        if p.mn.startswith("v_dot") and c.cls in ("valu", "mfma", "vmem", "ds") and pw & (c.rd | c.wr):
            same = c.mn == p.mn and not (pw & (regs_of(c.ops[1]) | regs_of(c.ops[2])))
            if not same: n = max(n, 3)
        if c.cls == "vmem" and ps & c.rd: n = max(n, 5)
        if c.cls in ("salu", "smem") and ps & c.rd: n = max(n, 1)
    if p.cls == "mfma":
        big = p.passes == 8
        if c.cls == "mfma":
            if p.wr & c.srcab: n = max(n, 12 if big else 8)
            if p.wr & c.srcc and not (p.wr == c.srcc and p.passes == c.passes): n = max(n, 10 if big else 6)
            if p.wr & c.wr and not (p.wr == c.srcc and p.passes == c.passes): n = max(n, 10 if big else 6)
        elif c.cls in ("valu", "vmem", "ds"):
            if p.wr & (c.rd | c.wr): n = max(n, 12 if big else 8)
            if c.cls == "valu" and p.srcc & c.wr: n = max(n, 7 if big else 3)
    if p.cls == "salu" and ("s", "m0") in p.wr and c.cls == "vmem" and c.lds: n = max(n, 1)
    if p.cls == "vmem" and p.stdata and p.stdata & c.wr: n = max(n, 2)
    return n

def pad_hazards(lines):
    ins = [Ins(l) for l in lines]
    out = []
    nops = 0
    for c in ins:
        if c.cls != "none":
            dist = 0; req = 0
            for p in reversed(out):
                if dist >= 20: break
                if p.cls != "none":
                    r = need(p, c) - dist
                    if r > req: req = r
                    dist += p.states
            if req > 0:
                out.append(Ins(f"    s_nop {req-1}")); nops += 1
        out.append(c)
    return [i.text for i in out], nops

class Asm:
    def __init__(self):
        self.lines = []; self.ool = []
        self.vm = 0; self.lg = 0; self.uid = 0
    def __call__(self, s, track=True):
        tok = None
        for l in s.strip("\n").split("\n"):
            l = l.strip()
            if not l: continue
            self.lines.append(l if (l.endswith(":") or l.startswith(".")) else "    " + l)
            mn = l.split()[0]
            if track:
                if mn.startswith("buffer_") or mn.startswith("global_"):
                    self.vm += 1; tok = ("vm", self.vm)
                elif mn.startswith("ds_"):
                    self.lg += 1; tok = ("lg", self.lg)
        return tok
    def wait(self, *toks):
        vm = [t[1] for t in toks if t and t[0] == "vm"]; lg = [t[1] for t in toks if t and t[0] == "lg"]
        parts = []
        if vm: parts.append(f"vmcnt({min(63, self.vm - max(vm))})")
        if lg: parts.append(f"lgkmcnt({min(15, self.lg - max(lg))})")
        if parts: self.lines.append("    s_waitcnt " + " ".join(parts))
    def label(self, base):
        self.uid += 1
        return f"L_{base}_{self.uid}"
    def reset(self):
        self.vm = 0; self.lg = 0

class Regs:
    def __init__(self, lo, hi):
        self.free = list(range(lo, hi)); self.named = {}
    def alloc(self, name, n=1, align=None):
        if align is None: align = 1 if n == 1 else (2 if n < 4 else 4)
        fs = set(self.free)
        for s in self.free:
            if s % align == 0 and all((s + k) in fs for k in range(n)):
                for k in range(n): self.free.remove(s + k)
                assert name not in self.named, name
                self.named[name] = (s, n)
                return s
        raise RuntimeError(f"no regs for {name} x{n}; free={len(self.free)}")
    def release(self, *names):
        for name in names:
            s, n = self.named.pop(name)
            self.free = sorted(self.free + list(range(s, s + n)))
def vr(s, n=1): return f"v{s}" if n == 1 else f"v[{s}:{s+n-1}]"
def sr(s, n=1): return f"s{s}" if n == 1 else f"s[{s}:{s+n-1}]"
```

```python
import sys, struct, math
from asmdsl import *

NAME = "recurrent_scan__ssm_conv_s4d__mixer_channel_mlp__prompt"
OPT = dict(diag=False, dump=False, rot=1, prio=0)

W_TAG = 0; W_FT = 0x1000; W_FH = 0x9000; W_FS = 0x11000; W_ST = 0x20000; W_DIAG = 0x40000
W_XT = 0x100000; W_S = 0x300000; W_H = 0x500000; W_END = 0xA60000; W_DUMP = 0x1000000
OOB = 0x40000000
TAGSTEP = 0x9E3779B9
L_GP = 0; L_SP = 16; L_CT = 32; L_CH = 36; L_CS = 40; L_TAG = 44
L_CST = 64; L_B1 = 448; L_DUM = 1024 - 192 - 64
L_DUM = 832
L_KP = 1088; KP_STRIDE = 1408
L_U = 4096; U_STRIDE = 4608
L_KC = 13312; KC_STRIDE = 4160
L_PAR = L_KC; L_KRED = L_KC + 4096
L_ST = 1088; L_XO = L_ST + 12288 + 64; L_EX = L_XO + 8192
L_XO = (L_XO + 255) // 256 * 256; L_EX = L_XO + 8192
L_G = 46592
L_XR = L_G; L_WR = L_G + 65536; L_W2 = L_G; W2_HALF = 57344
L_TOT = L_G + 114688
assert L_EX + 16384 <= L_G and L_TOT <= 163840 and L_G % 256 == 0 and L_KC % 256 == 0

def f2u(x): return struct.unpack("<I", struct.pack("<f", x))[0]
LOG2E = 1.4426950408889634

sWAVE, sW, sJ, sI = 34, 35, 36, 37
SX, SW1, SW2, SWS, SOUT, SB1 = 40, 44, 48, 52, 56, 60
sRB, sCB, sTB, sCP, sLB, sDB, sSU, sNT, sROT, sTAG = range(64, 74)
sT = list(range(74, 88)); sSPIN = 88

class K(Asm):
    def __init__(self):
        super().__init__()
        self.stamps = []; self.stamp_regs = []
    def srd(self, s, ptr, size):
        self(f"s_mov_b32 s{s}, s{ptr}\ns_mov_b32 s{s+1}, s{ptr+1}\ns_mov_b32 s{s+2}, {size}\ns_mov_b32 s{s+3}, 0x20000")
    def stamp(self, name):
        if not OPT["diag"]: return
        r = self.stamp_regs[len(self.stamps)]
        self.stamps.append((name, r))
        self(f"s_memtime s[{r}:{r+1}]")
    def flush_stamps(self, vA, vB):
        if not OPT["diag"]: return
        self(f"""s_memrealtime s[38:39]
s_waitcnt lgkmcnt(0)
s_lshl_b32 s3, s2, 3
s_add_u32 s3, s3, s{sWAVE}
s_lshl_b32 s3, s3, 7
s_add_u32 s3, s3, {W_DIAG}
v_mov_b32 v{vA}, s3""")
        for k, (n, r) in enumerate(self.stamps):
            self(f"v_mov_b32 v{vB}, s{r}\nglobal_store_dword v{vA}, v{vB}, s[32:33] offset:{4*k}\ns_nop 1")
        self(f"v_mov_b32 v{vB}, s38\nglobal_store_dword v{vA}, v{vB}, s[32:33] offset:124")
        OPT.setdefault("stampnames", []).append([n for n, r in self.stamps])
        self.stamps = []
    def signal(self, vSIG, vTMP, val):
        self(f"v_mov_b32 v{vTMP}, {val}")
        return self(f"ds_write_b32 v{vSIG}, v{vTMP}")
    def prog_read(self, vP, vZ, base):
        return self(f"ds_read_b128 {vr(vP,4)}, v{vZ} offset:{base}")
    def prog_check(self, tok, vP, vZ, base, val):
        self.wait(tok)
        a = self.label("chk"); s = self.label("slow")
        self(f"""{a}:
v_min3_u32 v{vP}, v{vP}, v{vP+1}, v{vP+2}
v_min_u32 v{vP}, v{vP}, v{vP+3}
v_cmp_gt_u32 vcc, {val}, v{vP}
s_cbranch_vccnz {s}""")
        self.ool.append(f"""{s}:
s_sleep 1
ds_read_b128 {vr(vP,4)}, v{vZ} offset:{base}
s_add_u32 s{sSPIN}, s{sSPIN}, 1
s_cmp_ge_u32 s{sSPIN}, 0x40000
s_cbranch_scc1 L_end
s_waitcnt lgkmcnt(0)
s_branch {a}""")
    def sync_wait(self, vP, vZ, base, val):
        self.prog_check(self.prog_read(vP, vZ, base), vP, vZ, base, val)
    def poll_check(self, tok, conds, reload, sleep=4):
        self.wait(tok)
        a = self.label("pchk"); s = self.label("pslow")
        self(f"{a}:\nv_cmp_ne_u32 vcc, s{sTAG}, v{conds[0]}")
        for c in conds[1:]:
            self(f"v_cmp_ne_u32 s[38:39], s{sTAG}, v{c}\ns_or_b64 vcc, vcc, s[38:39]")
        self(f"s_cbranch_vccnz {s}")
        self.ool.append(f"""{s}:
s_sleep {sleep}
{reload}
s_add_u32 s{sSPIN}, s{sSPIN}, 16
s_cmp_ge_u32 s{sSPIN}, 0x40000
s_cbranch_scc1 L_end
s_waitcnt vmcnt(0)
s_branch {a}""")
    def arrive_publish(self, vCTR, vONE, vR, vA, sflag):
        t = self(f"ds_add_rtn_u32 v{vR}, v{vCTR}, v{vONE}")
        self.wait(t)
        b = self.label("pub"); r = self.label("pubret")
        self(f"v_readfirstlane_b32 s3, v{vR}\ns_cmp_eq_u32 s3, 3\ns_cbranch_scc1 {b}\n{r}:")
        self.ool.append(f"""{b}:
v_mov_b32 v{vA}, s{sflag}
v_mov_b32 v{vR}, s{sTAG}
s_mov_b64 exec, 1
global_store_dword v{vA}, v{vR}, s[32:33] sc1
s_mov_b64 exec, -1
s_nop 1
s_branch {r}""")

def common(a):
    a(f"""s_cmp_ge_u32 s2, 256
s_cbranch_scc1 L_end
s_load_dwordx16 s[4:19], s[0:1], 0
s_load_dwordx8 s[20:27], s[0:1], 64
s_load_dwordx4 s[28:31], s[0:1], 96
s_load_dwordx2 s[32:33], s[0:1], 112
s_getpc_b64 s[38:39]
L_pc:
v_lshrrev_b32 v2, 6, v0
v_lshlrev_b32 v3, 7, v0
v_min_u32 v3, L_tabend-L_pc-4, v3
v_readfirstlane_b32 s{sWAVE}, v2
global_load_dword v255, v3, s[38:39]
v_and_b32 v1, 63, v0
s_and_b32 s{sJ}, s2, 7
s_lshr_b32 s{sI}, s2, 3
s_and_b32 s{sW}, s{sWAVE}, 3
s_mov_b32 s{sSPIN}, 0
s_lshr_b32 s{sT[0]}, s{sI}, 3
s_lshr_b32 s{sT[1]}, s{sJ}, 1
s_lshl2_add_u32 s{sRB}, s{sT[1]}, s{sT[0]}
s_and_b32 s{sDB}, s{sI}, 7
s_and_b32 s{sT[1]}, s{sJ}, 1
s_lshl3_add_u32 s{sCB}, s{sT[1]}, s{sDB}
s_lshl2_add_u32 s{sLB}, s{sJ}, s{sT[0]}
s_cmp_lt_u32 s{sWAVE}, 4
s_cbranch_scc1 L_G""")

def s_prologue(a, R):
    a.stamp_regs = [20, 22, 24, 26, 44, 46, 48, 50, 56, 58, 60, 62, 90, 92, 94, 96, 98, 100]
    X = R.alloc("X", 8); P = R.alloc("P", 4); C = R.alloc("C", 12); TAG = R.alloc("TAG"); Z = R.alloc("Z")
    t0 = R.alloc("t0"); t1 = R.alloc("t1"); t2 = R.alloc("t2")
    a.S = dict(X=X, P=P, C=C, TAG=TAG, Z=Z)
    a(f"""s_lshl4_add_u32 s{sTB}, s{sRB}, s{sCB}
s_lshl_b32 s{sCP}, s{sJ}, 5
s_add_u32 s{sCP}, s{sCP}, s{sI}
v_mov_b32 v{Z}, 0
v_lshrrev_b32 v{t0}, 5, v1
v_and_b32 v{t1}, 31, v1
s_lshl_b32 s{sT[0]}, s{sTB}, 13
s_lshl_b32 s{sT[1]}, s{sW}, 11
s_add_u32 s{sT[0]}, s{sT[0]}, s{sT[1]}
v_lshlrev_b32 v{t0}, 10, v{t0}
v_lshl_add_u32 v{t0}, v{t1}, 4, v{t0}
v_add_u32 v{t0}, s{sT[0]}, v{t0}
s_lshl_b32 s{sT[0]}, s{sCP}, 9
s_lshl_b32 s{sT[1]}, s{sW}, 7
s_add_u32 s{sT[0]}, s{sT[0]}, s{sT[1]}
v_lshl_add_u32 v{t1}, v1, 1, s{sT[0]}
v_lshlrev_b32 v{t2}, 4, v1
s_add_u32 s38, s38, L_tab-L_pc
s_addc_u32 s39, s39, 0
s_lshl_b32 s{sT[2]}, s{sCP}, 2
ds_write_b32 v{t2}, v{Z} offset:0
ds_write_b32 v{t2}, v{Z} offset:4
ds_write_b32 v{t2}, v{Z} offset:8
ds_write_b32 v{t2}, v{Z} offset:12
s_waitcnt lgkmcnt(0)""")
    a.S["tX0"] = a(f"global_load_dwordx4 {vr(X,4)}, v{t0}, s[4:5]")
    a.S["tX1"] = a(f"global_load_dwordx4 {vr(X+4,4)}, v{t0}, s[4:5] offset:512")
    a.S["tTAG"] = a(f"global_load_dword v{TAG}, v{Z}, s[32:33] sc1")
    for k, p in enumerate((6, 8, 10, 12)):
        a.S["tP"] = a(f"global_load_ushort v{P+k}, v{t1}, s[{p}:{p+1}]")
    for k in range(3):
        a.S["tC"] = a(f"global_load_dwordx4 {vr(C+4*k,4)}, v{t2}, s[38:39] offset:{1024*k}")
    a(f"""s_load_dword s{sT[12]}, s[14:15], s{sT[2]}
s_load_dword s{sT[13]}, s[16:17], s{sT[2]}
s_barrier
s_branch L_S""")
    R.release("t0", "t1", "t2")

def reduce16(a, regs, op="v_add_f32"):
    for pat in ("quad_perm:[1,0,3,2]", "quad_perm:[2,3,0,1]", "row_half_mirror", "row_mirror"):
        for r in regs:
            a(f"{op}_dpp v{r}, v{r}, v{r} {pat} row_mask:0xf bank_mask:0xf")
def swap_reduce(a, regs, tmps, which, op="v_add_f32"):
    for r, t in zip(regs, tmps): a(f"v_mov_b32 v{t}, v{r}")
    for r, t in zip(regs, tmps): a(f"v_permlane{which}_swap_b32 v{r}, v{t}")
    for r, t in zip(regs, tmps): a(f"{op} v{r}, v{r}, v{t}")
def bf16r(a, d, s):
    a(f"v_cvt_pk_bf16_f32 v{d}, v{s}, v{s}\nv_lshlrev_b32 v{d}, 16, v{d}")
def exp_acc(a, d, x, t0, t1, sL, sLlo, sLn2):
    a(f"""v_mul_f32 v{t0}, s{sL}, v{x}
v_fma_f32 v{t1}, v{x}, s{sL}, -v{t0}
v_exp_f32 v{d}, v{t0}
v_fma_f32 v{t1}, v{x}, s{sLlo}, v{t1}
v_mul_f32 v{t1}, s{sLn2}, v{t1}
v_fma_f32 v{d}, v{d}, v{t1}, v{d}""")

def s_main(a, R):
    S = a.S; X, P, C, TAG, Z = S["X"], S["P"], S["C"], S["TAG"], S["Z"]
    a("L_S:")
    a.stamp("S_begin")
    a.srd(SWS, 32, W_END if not OPT["dump"] else 0x8000000)
    a.srd(SX, 4, 2097152)
    SIG = R.alloc("SIG"); CTR = R.alloc("CTR"); ONE = R.alloc("ONE"); PR = R.alloc("PR", 4)
    t = [R.alloc(f"t{i}") for i in range(8)]
    F = R.alloc("F", 16)
    a(f"""s_lshl_b32 s{sT[0]}, s{sW}, 2
s_add_u32 s{sT[0]}, s{sT[0]}, {L_SP}
v_lshlrev_b32 v{SIG}, 2, v1
v_add_u32 v{SIG}, {L_DUM}, v{SIG}
v_mov_b32 v{CTR}, v{SIG}
v_mov_b32 v{ONE}, 1
v_writelane_b32 v{SIG}, s{sT[0]}, 0
v_writelane_b32 v{CTR}, {L_CT}, 0
s_mov_b32 s{sT[0]}, 0xffff0000
s_mov_b32 s{sT[1]}, 0x3f803f80
s_mov_b32 s{sT[2]}, {f2u(1/512)}
s_mov_b32 s{sT[3]}, {f2u(1e-5)}""")
    STW, TRA, XTO = t[5], t[6], t[7]
    a(f"""v_lshrrev_b32 v{t[0]}, 5, v1
s_lshl_b32 s{sT[4]}, s{sW}, 1
s_sub_u32 s{sT[4]}, 7, s{sT[4]}
v_sub_u32 v{t[0]}, s{sT[4]}, v{t[0]}
v_mul_u32_u24 v{t[0]}, 1088, v{t[0]}
v_and_b32 v{t[1]}, 31, v1
v_lshl_add_u32 v{STW}, v{t[1]}, 4, v{t[0]}
v_bfe_u32 v{t[0]}, v1, 2, 2
v_mul_u32_u24 v{t[0]}, 1088, v{t[0]}
v_lshrrev_b32 v{t[1]}, 4, v1
v_lshl_add_u32 v{t[0]}, v{t[1]}, 5, v{t[0]}
v_and_b32 v{t[1]}, 3, v1
v_lshl_add_u32 v{t[0]}, v{t[1]}, 3, v{t[0]}
s_lshl_b32 s{sT[4]}, s{sW}, 8
v_add_u32 v{TRA}, s{sT[4]}, v{t[0]}
s_lshl_b32 s{sT[4]}, s{sTB}, 13
s_lshl_b32 s{sT[5]}, s{sW}, 11
s_add_u32 s{sT[4]}, s{sT[4]}, s{sT[5]}
s_add_u32 s{sT[4]}, s{sT[4]}, {W_XT}
v_lshl_add_u32 v{XTO}, v1, 4, s{sT[4]}""")
    a.wait(S["tX1"])
    a.stamp("T_data")
    m, mb, ss, r1, va = t[0], t[1], t[2], t[3], t[4]
    a(f"v_mov_b32 v{m}, 0")
    for k in range(8): a(f"v_dot2_f32_bf16 v{m}, v{X+k}, s{sT[1]}, v{m}")
    for k in range(8):
        a(f"v_lshlrev_b32 v{F+2*k}, 16, v{X+k}\nv_and_b32 v{F+2*k+1}, s{sT[0]}, v{X+k}")
    reduce16(a, [m]); swap_reduce(a, [m], [ss], 16)
    a(f"v_mul_f32 v{m}, s{sT[2]}, v{m}")
    MB = R.alloc("MB", 2); ACC = R.alloc("ACC", 2)
    bf16r(a, MB, m)
    for k in range(8):
        a(f"v_pk_add_f32 {vr(F+2*k,2)}, {vr(F+2*k,2)}, {vr(MB,2)} op_sel_hi:[1,0] neg_lo:[0,1] neg_hi:[0,1]")
    a(f"v_pk_mul_f32 {vr(ACC,2)}, {vr(F,2)}, {vr(F,2)}")
    for k in range(1, 8): a(f"v_pk_fma_f32 {vr(ACC,2)}, {vr(F+2*k,2)}, {vr(F+2*k,2)}, {vr(ACC,2)}")
    a(f"v_add_f32 v{ss}, v{ACC}, v{ACC+1}")
    for k in range(8): a(f"v_cvt_pk_bf16_f32 v{X+k}, v{F+2*k}, v{F+2*k+1}")
    reduce16(a, [ss]); swap_reduce(a, [ss], [va], 16)
    for k in range(8):
        a(f"v_lshlrev_b32 v{F+2*k}, 16, v{X+k}\nv_and_b32 v{F+2*k+1}, s{sT[0]}, v{X+k}")
    a(f"""v_sub_f32 v{m}, v{m}, v{MB}
v_mul_f32 v{m}, v{m}, v{m}
v_fma_f32 v{va}, v{ss}, s{sT[2]}, -v{m}
v_max_f32 v{va}, 0, v{va}""")
    bf16r(a, va, va)
    a(f"v_add_f32 v{va}, s{sT[3]}, v{va}")
    bf16r(a, va, va)
    a(f"v_sqrt_f32 v{va}, v{va}")
    bf16r(a, va, va)
    a(f"v_rcp_f32 v{ACC}, v{va}")
    for k in range(8):
        a(f"v_pk_mul_f32 {vr(F+2*k,2)}, {vr(F+2*k,2)}, {vr(ACC,2)} op_sel_hi:[1,0]")
    for k in range(8): a(f"v_cvt_pk_bf16_f32 v{X+k}, v{F+2*k}, v{F+2*k+1}")
    a(f"ds_write_b128 v{STW}, {vr(X,4)} offset:{L_U}\nds_write_b128 v{STW}, {vr(X+4,4)} offset:{L_U+512}")
    a.wait(S["tTAG"])
    a(f"""v_add_u32 v{TAG}, {TAGSTEP}, v{TAG}
s_nop 0
v_readfirstlane_b32 s{sTAG}, v{TAG}
ds_write_b32 v{Z}, v{TAG} offset:{L_TAG}""")
    a.signal(SIG, t[0], 1)
    tk = a.prog_read(PR, Z, L_SP)
    s2, q2 = t[0], t[2]
    a(f"v_mov_b32 v{s2}, 0\nv_mov_b32 v{q2}, 0")
    for k in range(8):
        a(f"v_dot2_f32_bf16 v{s2}, v{X+k}, s{sT[1]}, v{s2}\nv_dot2_f32_bf16 v{q2}, v{X+k}, v{X+k}, v{q2}")
    reduce16(a, [s2, q2]); swap_reduce(a, [s2, q2], [t[1], t[3]], 16)
    a.prog_check(tk, PR, Z, L_SP, 1)
    for ii in range(2):
        for h2 in range(2):
            tk = a(f"ds_read_b64_tr_b16 {vr(F+4*ii+2*h2,2)}, v{TRA} offset:{L_U+128*ii+4352*h2}")
    ST = F + 8
    a(f"""v_mul_f32 v{s2}, s{sT[2]}, v{s2}
v_mul_f32 v{t[1]}, v{s2}, v{s2}
v_fma_f32 v{q2}, v{q2}, s{sT[2]}, -v{t[1]}
v_max_f32 v{q2}, 0, v{q2}""")
    bf16r(a, s2, s2); bf16r(a, q2, q2)
    a(f"v_add_f32 v{q2}, s{sT[3]}, v{q2}")
    bf16r(a, q2, q2)
    a(f"v_sqrt_f32 v{q2}, v{q2}")
    bf16r(a, q2, q2)
    a(f"""v_rcp_f32 v{q2}, v{q2}
v_mov_b32 v{ST+1}, v{TAG}
v_mov_b32 v{ST+3}, v{TAG}
v_mul_f32 v{ST}, v{ACC}, v{q2}
v_mul_f32 v{s2}, v{s2}, v{q2}
v_fma_f32 v{ST+2}, v{MB}, v{ST}, v{s2}
v_lshrrev_b32 v{t[1]}, 5, v1
s_lshl_b32 s{sT[4]}, s{sTB}, 7
s_lshl_b32 s{sT[5]}, s{sW}, 5
s_add_u32 s{sT[4]}, s{sT[4]}, s{sT[5]}
s_add_u32 s{sT[4]}, s{sT[4]}, {W_ST}
v_lshl_add_u32 v{t[1]}, v{t[1]}, 4, s{sT[4]}
s_mov_b32 exec_lo, 1
s_mov_b32 exec_hi, 1
buffer_store_dwordx4 {vr(ST,4)}, v{t[1]}, s[{SWS}:{SWS+3}], 0 offen sc1
s_mov_b64 exec, -1""")
    a.wait(tk)
    a(f"buffer_store_dwordx4 {vr(F,4)}, v{XTO}, s[{SWS}:{SWS+3}], 0 offen sc1")
    tXT = a(f"buffer_store_dwordx4 {vr(F+4,4)}, v{XTO}, s[{SWS}:{SWS+3}], 0 offen offset:1024 sc1")
    a.stamp("T_stored")
    R.release("MB", "ACC", "X")
    sL, sLlo, sLn2 = sT[4], sT[5], sT[6]
    Lhi = struct.unpack("<f", struct.pack("<f", LOG2E))[0]
    a(f"""s_mov_b32 s{sL}, {f2u(Lhi)}
s_mov_b32 s{sLlo}, {f2u(LOG2E-Lhi)}
s_mov_b32 s{sLn2}, {f2u(math.log(2))}
s_waitcnt lgkmcnt(0)
s_bitcmp1_b32 s{sW}, 1
s_cselect_b32 s{sT[7]}, 0, 16
s_lshl_b32 s{sT[12]}, s{sT[12]}, s{sT[7]}
s_and_b32 s{sT[12]}, s{sT[12]}, 0xffff0000
s_lshl_b32 s{sT[13]}, s{sT[13]}, s{sT[7]}
s_and_b32 s{sT[13]}, s{sT[13]}, 0xffff0000
v_mov_b32 v{t[0]}, s{sT[12]}""")
    a.wait(S["tC"])
    Q = R.alloc("Q", 4); DT = R.alloc("DT"); FIN = R.alloc("FIN", 2)
    for k in range(4): a(f"v_lshlrev_b32 v{P+k}, 16, v{P+k}")
    exp_acc(a, DT, t[0], t[1], t[2], sL, sLlo, sLn2)
    exp_acc(a, t[3], P, t[4], t[5], sL, sLlo, sLn2)
    a(f"v_and_b32 v{t[0]}, 0x7fffffff, v{P+2}\nv_and_b32 v{t[1]}, 0x7fffffff, v{P+3}\nv_max_u32 v{t[0]}, v{t[0]}, v{t[1]}")
    bf16r(a, DT, DT); bf16r(a, t[3], t[3])
    reduce16(a, [t[0]], "v_max_u32"); swap_reduce(a, [t[0]], [t[1]], 16, "v_max_u32"); swap_reduce(a, [t[0]], [t[1]], 32, "v_max_u32")
    a(f"""v_mul_f32 v{t[3]}, v{t[3]}, v{DT}
v_mul_f32 v{t[4]}, v{P+1}, v{DT}
v_mul_f32 v{Q}, {f2u(-LOG2E)}, v{t[3]}
v_mul_f32 v{t[4]}, {f2u(1/(2*math.pi))}, v{t[4]}
v_rndne_f32 v{t[5]}, v{t[4]}
v_sub_f32 v{Q+1}, v{t[4]}, v{t[5]}
v_and_b32 v{t[0]}, 0x7f800000, v{t[0]}
v_max_u32 v{t[0]}, 0x00800000, v{t[0]}
v_min_u32 v{t[0]}, 0x7e800000, v{t[0]}
v_sub_u32 v{t[1]}, 0x7f000000, v{t[0]}
v_mul_f32 v{Q+2}, v{P+2}, v{t[1]}
v_mul_f32 v{Q+3}, v{P+3}, v{t[1]}
v_add_f32 v{DT}, v{DT}, v{DT}
v_mul_f32 v{FIN}, v{DT}, v{t[0]}
s_lshl_b32 s{sT[7]}, s{sW}, 10
v_lshl_add_u32 v{t[0]}, v1, 4, s{sT[7]}
v_lshrrev_b32 v{t[1]}, 4, v1
v_lshl_add_u32 v{t[1]}, v{t[1]}, 6, s{sT[7]}
ds_write_b128 v{t[0]}, {vr(Q,4)} offset:{L_PAR}""")
    R.release("Q", "DT", "P", "F")
    PP = R.alloc("PP", 64)
    tk = []
    for s in range(4):
        for j in range(4):
            tk.append(a(f"ds_read_b128 {vr(PP+16*s+4*j,4)}, v{t[1]} offset:{L_PAR+256*s+16*j}"))
    OP = R.alloc("OP", 16); AK = R.alloc("AK", 12)
    AR = R.alloc("AR", 8); CSN = R.alloc("CSN", 8); E = R.alloc("E", 8)
    PC = C
    FL = R.alloc("FL"); FLA = R.alloc("FLA")
    a(f"""s_lshl_b32 s{sT[7]}, s{sW}, 13
s_add_u32 s{sT[7]}, s{sT[7]}, {W_FT}
v_lshl_add_u32 v{FLA}, v1, 7, s{sT[7]}
s_lshl_b32 s{sT[8]}, s{sTB}, 7
s_add_u32 s{sT[8]}, s{sT[8]}, {W_FT}""")
    tFL = None
    for s in range(4):
        for j in range(4):
            z = PP + 16*s + 4*j
            a.wait(tk[4*s+j])
            for q in range(4):
                sel = "op_sel_hi:[1,0]" if q % 2 == 0 else "op_sel:[0,1]"
                a(f"v_pk_mul_f32 {vr(AR+2*q,2)}, {vr(z,2)}, {vr(PC+(q&2),2)} {sel}")
            a(f"v_fract_f32 v{AR+3}, v{AR+3}\nv_fract_f32 v{AR+5}, v{AR+5}")
            for q in (3, 0, 1, 2):
                a(f"v_exp_f32 v{E+2*q}, v{AR+2*q}\nv_cos_f32 v{CSN+2*q}, v{AR+2*q+1}\nv_sin_f32 v{CSN+2*q+1}, v{AR+2*q+1}")
            for q in (3, 0, 1, 2):
                a(f"v_pk_mul_f32 {vr(CSN+2*q,2)}, {vr(CSN+2*q,2)}, {vr(E+2*q,2)} op_sel_hi:[1,0]")
            a(f"v_pk_mul_f32 {vr(AR,2)}, {vr(CSN+6,2)}, {vr(z+2,2)} op_sel_hi:[1,0] neg_hi:[1,0]")
            a(f"v_cvt_pk_f16_f32 v{OP+j}, v{CSN}, v{CSN+1}")
            a(f"v_pk_fma_f32 {vr(AR,2)}, {vr(CSN+6,2)}, {vr(z+2,2)}, {vr(AR,2)} op_sel:[1,1,0] op_sel_hi:[0,1,1] neg_lo:[1,0,0] neg_hi:[1,0,0]")
            a(f"v_cvt_pk_f16_f32 v{OP+4+j}, v{CSN+2}, v{CSN+3}\nv_cvt_pk_f16_f32 v{OP+8+j}, v{CSN+4}, v{CSN+5}")
            a(f"v_cvt_pk_f16_f32 v{OP+12+j}, v{AR}, v{AR+1}")
        for q in range(3):
            a(f"v_mfma_f32_16x16x32_f16 {vr(AK+4*q,4)}, {vr(OP+4*q,4)}, {vr(OP+12,4)}, {vr(AK+4*q,4) if s else 0}")
        if s == 0:
            a.wait(tXT)
            a.arrive_publish(CTR, ONE, t[2], t[3], sT[8])
            a.stamp("T_pub")
        if s == 2:
            tFL = a(f"global_load_dword v{FL}, v{FLA}, s[32:33] sc1")
    a.stamp("K_done")
    R.release("PP", "OP", "AR", "CSN", "E")
    GA = R.alloc("GA"); UW = R.alloc("UW"); UD = R.alloc("UD", 8); KR = R.alloc("KR", 12)
    a(f"""v_lshrrev_b32 v{t[0]}, 1, v1
v_and_b32 v{t[1]}, 1, v1
s_lshl_b32 s{sT[7]}, s{sW}, 19
s_lshl_b32 s{sT[9]}, s{sCP}, 5
s_add_u32 s{sT[7]}, s{sT[7]}, s{sT[9]}
s_add_u32 s{sT[7]}, s{sT[7]}, {W_XT}
v_lshlrev_b32 v{GA}, 13, v{t[0]}
v_lshl_add_u32 v{GA}, v{t[1]}, 4, v{GA}
v_add_u32 v{GA}, s{sT[7]}, v{GA}
s_lshl_b32 s{sT[7]}, s{sW}, 10
s_sub_u32 s{sT[7]}, {L_U+4080-512}, s{sT[7]}
v_mul_u32_u24 v{t[1]}, {U_STRIDE}, v{t[1]}
v_lshlrev_b32 v{t[0]}, 4, v{t[0]}
v_sub_u32 v{t[1]}, v{t[1]}, v{t[0]}
v_add_u32 v{UW}, s{sT[7]}, v{t[1]}
s_mov_b32 s{sT[9]}, {32*8192}""")
    a.poll_check(tFL, [FL], f"global_load_dword v{FL}, v{FLA}, s[32:33] sc1")
    a.stamp("T_seen")
    a(f"buffer_load_dwordx4 {vr(UD,4)}, v{GA}, s[{SWS}:{SWS+3}], 0 offen sc1")
    tU = a(f"buffer_load_dwordx4 {vr(UD+4,4)}, v{GA}, s[{SWS}:{SWS+3}], s{sT[9]} offen sc1")
    R.release("FL", "FLA", "GA")
    for k in range(6):
        a(f"v_pk_mul_f32 {vr(AK+2*k,2)}, {vr(AK+2*k,2)}, {vr(FIN,2)} op_sel_hi:[1,0]")
    lo = a.label("khalf0"); jn = a.label("kjoin")
    a(f"""s_lshr_b32 s{sT[7]}, s{sW}, 1
s_mul_i32 s{sT[8]}, s{sT[7]}, 3072
v_lshl_add_u32 v{t[0]}, v1, 4, s{sT[8]}
s_mul_i32 s{sT[8]}, s{sT[7]}, {KP_STRIDE}
s_bitcmp1_b32 s{sW}, 0
s_cbranch_scc0 {lo}""")
    for q in range(3): a(f"ds_write_b128 v{t[0]}, {vr(AK+4*q,4)} offset:{L_KRED+1024*q}")
    a.signal(SIG, t[1], 3)
    a(f"s_branch {jn}\n{lo}:")
    a.signal(SIG, t[1], 2)
    a.sync_wait(PR, Z, L_SP, 2)
    for q in range(3): tk = a(f"ds_read_b128 {vr(KR+4*q,4)}, v{t[0]} offset:{L_KRED+1024*q}")
    for k in range(4): a(f"v_add_u32 v{C+4+k}, s{sT[8]}, v{C+4+k}")
    a.wait(tk)
    for k in range(6): a(f"v_pk_add_f32 {vr(AK+2*k,2)}, {vr(AK+2*k,2)}, {vr(KR+2*k,2)}")
    for k in range(6): a(f"v_cvt_pk_bf16_f32 v{KR+k}, v{AK+2*k}, v{AK+2*k+1}")
    a(f"""ds_write_b64 v{C+6}, {vr(KR,2)} offset:{L_KP}
ds_write_b32 v{C+4}, v{KR+2} offset:{L_KP}
ds_write_b32 v{C+5}, v{KR+3} offset:{L_KP}
ds_write_b16 v{C+7}, v{KR+4} offset:{L_KP}
ds_write_b16_d16_hi v{C+7}, v{KR+4} offset:{L_KP+32}
ds_write_b16 v{C+7}, v{KR+5} offset:{L_KP+64}
ds_write_b16_d16_hi v{C+7}, v{KR+5} offset:{L_KP+96}""")
    a.signal(SIG, t[1], 3)
    a(f"{jn}:\ns_waitcnt lgkmcnt(0)")
    a.sync_wait(PR, Z, L_SP, 3)
    a.stamp("KP_done")
    R.release("AK", "KR", "FIN")
    Wn = R.alloc("Wn", 8); O = R.alloc("O", 32)
    sSEL = {(0,0): sT[4], (0,1): sT[5], (1,0): sT[6], (1,1): sT[7]}
    for (ha, hb), r in sSEL.items():
        sel = (2*ha) | ((2*ha+1) << 8) | ((4+2*hb) << 16) | ((5+2*hb) << 24)
        a(f"s_mov_b32 s{r}, {sel}")
    def expand(qf, nout, DST):
        for s in range(4):
            for d in range(nout // 2):
                q1, q2_ = qf(s + 2*d), qf(s + 2*d + 1)
                dst = O + (s % (32 // (nout//2))) * (nout//2) + d if False else O + s*(nout//2) + d
                if q1 >> 1 == q2_ >> 1 and (q1 & 1, q2_ & 1) == (0, 1):
                    a(f"v_mov_b32 v{dst}, v{Wn+(q1>>1)}")
                else:
                    a(f"v_perm_b32 v{dst}, v{Wn+(q2_>>1)}, v{Wn+(q1>>1)}, s{sSEL[(q1&1, q2_&1)]}")
            for hh in range(nout // 8):
                a(f"ds_write_b128 v{DST}, {vr(O+s*(nout//2)+4*hh,4)} offset:{L_KC+s*KC_STRIDE+16*hh}")
    l1 = a.label("ex1"); l2 = a.label("ex2"); le = a.label("exend")
    SRC, DST = t[0], t[1]
    a(f"""v_lshrrev_b32 v{t[2]}, 5, v1
v_and_b32 v{t[3]}, 31, v1
v_mul_u32_u24 v{t[4]}, {KP_STRIDE}, v{t[2]}
v_mul_u32_u24 v{t[5]}, {4*KC_STRIDE}, v{t[2]}
s_cmp_eq_u32 s{sW}, 1
s_cbranch_scc1 {l1}
s_cmp_gt_u32 s{sW}, 1
s_cbranch_scc1 {l2}""")
    a(f"""v_lshl_add_u32 v{SRC}, v{t[3]}, 4, v{t[4]}
v_lshl_add_u32 v{DST}, v{t[3]}, 4, v{t[5]}
ds_read_b128 {vr(Wn,4)}, v{SRC} offset:{L_KP}
ds_read_b64 {vr(Wn+4,2)}, v{SRC} offset:{L_KP+16}
ds_read_u16 v{Wn+6}, v{C+8} offset:{L_KP}
v_lshrrev_b32 v{t[6]}, 1, v1
v_mul_u32_u24 v{t[6]}, {KC_STRIDE}, v{t[6]}
v_and_b32 v{t[7]}, 1, v1
v_lshl_add_u32 v{t[6]}, v{t[7]}, 4, v{t[6]}
v_mov_b32 v{O+28}, 0
v_mov_b32 v{O+29}, 0
v_mov_b32 v{O+30}, 0
v_mov_b32 v{O+31}, 0
s_mov_b64 exec, 0xffff
ds_write_b128 v{t[6]}, {vr(O+28,4)} offset:{L_KC}
s_mov_b64 exec, -1
v_add_u32 v{DST}, 32, v{DST}
v_lshl_add_u32 v{SRC}, v{t[3]}, 3, v{t[4]}
s_waitcnt lgkmcnt(0)""")
    expand(lambda o: o, 8, DST)
    a(f"""ds_read_b64 {vr(Wn,2)}, v{SRC} offset:{L_KP+512}
ds_read_b32 v{Wn+2}, v{SRC} offset:{L_KP+520}
v_add_u32 v{DST}, 512, v{DST}
s_waitcnt lgkmcnt(0)""")
    expand(lambda o: 2*(o >> 2) + (0, 0, 1, 2)[o & 3], 8, DST)
    a(f"ds_write_b16 v{C+9}, v{Wn+6}\ns_branch {le}")
    a(f"""{l1}:
v_lshl_add_u32 v{SRC}, v{t[3]}, 3, v{t[4]}
v_lshl_add_u32 v{DST}, v{t[3]}, 5, v{t[5]}
ds_read_b64 {vr(Wn,2)}, v{SRC} offset:{L_KP+768}
ds_read_b32 v{Wn+2}, v{SRC} offset:{L_KP+776}
v_add_u32 v{DST}, {32+1024}, v{DST}
s_waitcnt lgkmcnt(0)""")
    expand(lambda o: 2*(o >> 3) + (0,0,0,1,1,1,2,2)[o & 7], 16, DST)
    a(f"s_branch {le}")
    a(f"""{l2}:
s_and_b32 s{sT[8]}, s{sW}, 1
s_mul_i32 s{sT[9]}, s{sT[8]}, {KP_STRIDE}
s_mul_i32 s{sT[8]}, s{sT[8]}, {4*KC_STRIDE}
s_add_u32 s{sT[8]}, s{sT[8]}, {32+2048}
s_add_u32 s{sT[9]}, s{sT[9]}, {L_KP+1024}
v_lshl_add_u32 v{SRC}, v1, 2, s{sT[9]}
v_lshl_add_u32 v{DST}, v1, 5, s{sT[8]}
ds_read2_b32 {vr(Wn,2)}, v{SRC} offset0:0 offset1:1
s_waitcnt lgkmcnt(0)""")
    expand(lambda o: 2*(o >> 4) + (0,0,0,0,0,1,1,1,1,1,1,1,2,2,2,2)[o & 15], 16, DST)
    a(f"{le}:")
    a.stamp("EX_done")
    a(f"""v_mov_b32 v{O}, 0
v_mov_b32 v{O+1}, 0
v_and_b32 v{t[0]}, 15, v1
v_lshlrev_b32 v{t[0]}, 3, v{t[0]}
s_lshr_b32 s{sT[8]}, s{sW}, 1
s_mul_i32 s{sT[8]}, s{sT[8]}, {U_STRIDE}
s_and_b32 s{sT[9]}, s{sW}, 1
s_lshl_b32 s{sT[9]}, s{sT[9]}, 8
s_add_u32 s{sT[9]}, s{sT[9]}, s{sT[8]}
v_and_b32 v{t[0]}, 31, v1
v_lshl_add_u32 v{t[0]}, v{t[0]}, 3, s{sT[9]}
ds_write_b64 v{t[0]}, {vr(O,2)} offset:{L_U+4096}""")
    a.wait(tU)
    a(f"ds_write_b128 v{UW}, {vr(UD,4)} offset:512\nds_write_b128 v{UW}, {vr(UD+4,4)}")
    a.signal(SIG, t[1], 4)
    tk = a.prog_read(PR, Z, L_SP)
    R.release("Wn", "O", "UW", "UD", "C")
    AA = R.alloc("AA"); BA = R.alloc("BA"); Y = R.alloc("Y", 32)
    FA = [R.alloc(f"FA{i}", 32) for i in range(2)]; FB = [R.alloc(f"FB{i}", 32) for i in range(2)]
    a(f"""v_and_b32 v{t[0]}, 15, v1
v_lshrrev_b32 v{t[1]}, 4, v1
v_add_u32 v{t[2]}, 1, v{t[0]}
v_and_b32 v{t[3]}, 3, v{t[2]}
v_lshrrev_b32 v{t[2]}, 2, v{t[2]}
v_mul_u32_u24 v{t[3]}, {KC_STRIDE}, v{t[3]}
v_lshl_add_u32 v{t[3]}, v{t[2]}, 3, v{t[3]}
v_lshl_add_u32 v{t[3]}, v{t[1]}, 4, v{t[3]}
s_lshr_b32 s{sT[4]}, s{sW}, 1
s_and_b32 s{sT[5]}, s{sW}, 1
s_mul_i32 s{sT[6]}, s{sT[4]}, {4*KC_STRIDE}
s_lshl_b32 s{sT[7]}, s{sT[5]}, 8
s_add_u32 s{sT[9]}, s{sT[6]}, s{sT[7]}
s_add_u32 s{sT[9]}, s{sT[9]}, {L_KC}
v_add_u32 v{AA}, s{sT[9]}, v{t[3]}
s_add_u32 s{sT[9]}, s{sT[8]}, s{sT[7]}
s_add_u32 s{sT[9]}, s{sT[9]}, {L_U+2*(2032-256*7)}
v_lshlrev_b32 v{t[2]}, 4, v{t[1]}
v_lshlrev_b32 v{t[3]}, 5, v{t[0]}
v_sub_u32 v{t[2]}, v{t[2]}, v{t[3]}
v_add_u32 v{BA}, s{sT[9]}, v{t[2]}""")
    a.prog_check(tk, PR, Z, L_SP, 4)
    a.stamp("U_done")
    tu = a.label("tagupd"); tr = a.label("tagret")
    a(f"s_add_u32 s3, s2, s{sW}\ns_cmp_eq_u32 s3, 0\ns_cbranch_scc1 {tu}\n{tr}:")
    a.ool.append(f"""{tu}:
s_mov_b64 exec, 1
global_store_dword v{Z}, v{TAG}, s[32:33] sc1
s_mov_b64 exec, -1
s_branch {tr}""")
    if OPT["dump"]:
        dump_lds(a, L_KC, 8*KC_STRIDE, W_DUMP, t[0], FA[1], 40960)
        dump_lds(a, L_U, 2*U_STRIDE, W_DUMP + 0x1000000, t[0], FA[1], 12288)
    def rdA(c, k, buf):
        a(f"ds_read_b64 {vr(FA[buf]+4*k,2)}, v{AA} offset:{64*c+512*k}")
        return a(f"ds_read_b64 {vr(FA[buf]+4*k+2,2)}, v{AA} offset:{64*c+512*k+8}")
    def rdB(c, k, buf):
        return a(f"ds_read_b128 {vr(FB[buf]+4*k,4)}, v{BA} offset:{64*c+512*(7-k)}")
    tok = {}
    for k in range(8):
        tok[(0, "B", k)] = rdB(0, k, 0); tok[(0, "A", k)] = rdA(0, k, 0)
    first = [True]*8
    for c in range(4):
        buf = c & 1
        pend = [] if c == 3 else [(kind, k) for k in range(8) for kind in "BA"]
        cnt = 0
        for k in range(8):
            pairs = [(k, bb) for bb in range(k+1) if k+bb <= 7] + [(aa, k) for aa in range(k) if aa+k <= 7]
            if c == 0 or k == 0:
                a.wait(tok[(c, "A", k if c == 0 else 7)])
            for (aa, bb) in pairs:
                n = aa + bb
                a(f"v_mfma_f32_16x16x32_bf16 {vr(Y+4*n,4)}, {vr(FA[buf]+4*aa,4)}, {vr(FB[buf]+4*bb,4)}, {0 if first[n] else vr(Y+4*n,4)}")
                first[n] = False
                cnt += 1
                if pend and cnt % 2 == 0:
                    kind, kk = pend.pop(0)
                    tok[(c+1, kind, kk)] = (rdA if kind == "A" else rdB)(c+1, kk, buf ^ 1)
        assert not pend
        if c == 2: a.signal(SIG, t[0], 5)
    a.stamp("conv_done")
    R.release("FA0", "FB0", "FA1", "FB1", "AA", "BA")
    RD = R.alloc("RD", 16); UU = R.alloc("UU", 8); UF = R.alloc("UF", 4); DK = R.alloc("DK", 2)
    EXW, EXR, UA, BW, BR, SO = t[2], t[3], t[4], t[5], t[6], t[7]
    a(f"""s_add_u32 s{sT[6]}, s{sT[6]}, {L_KC}
s_lshl_b32 s{sT[7]}, s{sT[5]}, 12
s_add_u32 s{sT[9]}, s{sT[6]}, s{sT[7]}
v_lshl_add_u32 v{EXW}, v1, 4, s{sT[9]}
s_xor_b32 s{sT[7]}, s{sT[7]}, 4096
s_add_u32 s{sT[9]}, s{sT[6]}, s{sT[7]}
v_lshl_add_u32 v{EXR}, v1, 4, s{sT[9]}
v_and_b32 v{t[0]}, 15, v1
v_lshrrev_b32 v{t[1]}, 4, v1
v_lshlrev_b32 v{t[0]}, 5, v{t[0]}
v_lshl_add_u32 v{t[0]}, v{t[1]}, 3, v{t[0]}
s_lshl_b32 s{sT[7]}, s{sT[5]}, 11
s_sub_u32 s{sT[9]}, s{sT[8]}, s{sT[7]}
s_add_u32 s{sT[9]}, s{sT[9]}, {L_U+2*(2044-768)}
v_sub_u32 v{UA}, s{sT[9]}, v{t[0]}
s_add_u32 s{sT[9]}, s{sT[6]}, s{sT[7]}
s_add_u32 s{sT[9]}, s{sT[9]}, 8192
v_add_u32 v{BW}, s{sT[9]}, v{t[0]}
v_lshl_add_u32 v{BR}, v1, 4, s{sT[9]}
s_lshl_b32 s{sT[9]}, s{sCP}, 13
s_lshl_b32 s{sT[10]}, s{sW}, 11
s_add_u32 s{sT[9]}, s{sT[9]}, s{sT[10]}
s_add_u32 s{sT[9]}, s{sT[9]}, {W_S}
v_lshl_add_u32 v{SO}, v1, 4, s{sT[9]}
v_mov_b32 v{DK}, s{sT[13]}""")
    for n2 in range(4): tU = a(f"ds_read_b64 {vr(UU+2*n2,2)}, v{UA} offset:{512*(3-n2)}")
    a.sync_wait(PR, Z, L_SP, 5)
    k1 = a.label("ck1"); kj = a.label("ckj")
    a(f"s_bitcmp1_b32 s{sW}, 0\ns_cbranch_scc1 {k1}")
    for var in range(2):
        if var: a(f"{k1}:\ns_nop 7")
        own, oth = Y + 16*var, Y + 16*(1-var)
        for k in range(4): a(f"ds_write_b128 v{EXW}, {vr(oth+4*k,4)} offset:{1024*k}")
        a.signal(SIG, t[0], 6)
        a.sync_wait(PR, Z, L_SP, 6)
        for k in range(4): a(f"ds_read_b128 {vr(RD+4*k,4)}, v{EXR} offset:{1024*k}")
        a("s_waitcnt lgkmcnt(0)")
        for k in range(8): a(f"v_pk_add_f32 {vr(RD+2*k,2)}, {vr(RD+2*k,2)}, {vr(own+2*k,2)}")
        if not var: a(f"s_branch {kj}")
    a(f"{kj}:")
    for n2 in range(4):
        a(f"""v_and_b32 v{UF}, s{sT[0]}, v{UU+2*n2+1}
v_lshlrev_b32 v{UF+1}, 16, v{UU+2*n2+1}
v_and_b32 v{UF+2}, s{sT[0]}, v{UU+2*n2}
v_lshlrev_b32 v{UF+3}, 16, v{UU+2*n2}
v_pk_fma_f32 {vr(RD+4*n2,2)}, {vr(UF,2)}, {vr(DK,2)}, {vr(RD+4*n2,2)} op_sel_hi:[1,0,1]
v_pk_fma_f32 {vr(RD+4*n2+2,2)}, {vr(UF+2,2)}, {vr(DK,2)}, {vr(RD+4*n2+2,2)} op_sel_hi:[1,0,1]
v_cvt_pk_bf16_f32 v{UU+2*n2}, v{RD+4*n2}, v{RD+4*n2+1}
v_cvt_pk_bf16_f32 v{UU+2*n2+1}, v{RD+4*n2+2}, v{RD+4*n2+3}
ds_write_b64 v{BW}, {vr(UU+2*n2,2)} offset:{512*n2}""")
    a(f"ds_read_b128 {vr(RD,4)}, v{BR}")
    tk = a(f"ds_read_b128 {vr(RD+4,4)}, v{BR} offset:1024")
    a.signal(SIG, t[0], 7)
    a.wait(tk)
    a(f"buffer_store_dwordx4 {vr(RD,4)}, v{SO}, s[{SWS}:{SWS+3}], 0 offen sc1")
    tS = a(f"buffer_store_dwordx4 {vr(RD+4,4)}, v{SO}, s[{SWS}:{SWS+3}], 0 offen offset:1024 sc1")
    a.stamp("s_stored")
    FLA, SA, SW_, XD0, XD1 = t[2], t[3], t[4], t[5], t[6]
    FL = UF
    a(f"""v_writelane_b32 v{CTR}, {L_CS}, 0
s_lshl_b32 s{sT[4]}, s{sCP}, 7
s_add_u32 s{sT[4]}, s{sT[4]}, {W_FS}
v_and_b32 v{t[0]}, 7, v1
v_lshrrev_b32 v{t[1]}, 3, v1
s_lshl_b32 s{sT[5]}, s{sDB}, 12
s_lshl_b32 s{sT[6]}, s{sW}, 10
s_add_u32 s{sT[5]}, s{sT[5]}, s{sT[6]}
s_add_u32 s{sT[5]}, s{sT[5]}, {W_FS}
v_lshl_add_u32 v{FLA}, v{t[0]}, 7, s{sT[5]}
s_lshl_b32 s{sT[5]}, s{sDB}, 18
s_lshl_b32 s{sT[6]}, s{sW}, 16
s_add_u32 s{sT[5]}, s{sT[5]}, s{sT[6]}
s_lshl_b32 s{sT[6]}, s{sLB}, 7
s_add_u32 s{sT[5]}, s{sT[5]}, s{sT[6]}
s_add_u32 s{sT[5]}, s{sT[5]}, {W_S}
v_lshlrev_b32 v{SA}, 12, v{t[1]}
v_lshl_add_u32 v{SA}, v{t[0]}, 4, v{SA}
v_add_u32 v{SA}, s{sT[5]}, v{SA}
s_mul_i32 s{sT[5]}, s{sW}, {16*192}
v_mul_u32_u24 v{SW_}, 192, v{t[1]}
v_lshl_add_u32 v{SW_}, v{t[0]}, 4, v{SW_}
v_add_u32 v{SW_}, s{sT[5]}, v{SW_}
s_lshl_b32 s{sT[5]}, s{sLB}, 16
s_lshl_b32 s{sT[6]}, s{sW}, 14
s_add_u32 s{sT[5]}, s{sT[5]}, s{sT[6]}
s_lshl_b32 s{sT[6]}, s{sDB}, 7
s_add_u32 s{sT[5]}, s{sT[5]}, s{sT[6]}
v_lshrrev_b32 v{XD1}, 4, v1
v_xor_b32 v{t[0]}, v{t[0]}, v{XD1}
v_lshlrev_b32 v{t[1]}, 10, v{t[1]}
v_lshl_add_u32 v{XD0}, v{t[0]}, 4, v{t[1]}
v_add_u32 v{XD0}, s{sT[5]}, v{XD0}
v_xor_b32 v{XD1}, 64, v{XD0}
v_add_u32 v{XD1}, {8192-1024}, v{XD1}
s_lshl_b32 s{sT[6]}, s{sW}, 11
s_mov_b32 s{sT[9]}, {8*4096}""")
    a.sync_wait(PR, Z, L_SP, 7)
    a(f"""s_add_u32 m0, s{sT[6]}, {L_XO}
s_nop 0
buffer_load_dwordx4 v{XD0}, s[{SX}:{SX+3}], 0 offen lds
buffer_load_dwordx4 v{XD1}, s[{SX}:{SX+3}], 0 offen offset:1024 lds""")
    a.wait(tS)
    a.arrive_publish(CTR, ONE, t[0], t[1], sT[4])
    a.stamp("s_pub")
    a("s_sleep 12")
    rl = f"global_load_dword v{FL}, v{FLA}, s[32:33] sc1"
    a.poll_check(a(rl), [FL], rl)
    a.stamp("s_seen")
    a(f"buffer_load_dwordx4 {vr(RD,4)}, v{SA}, s[{SWS}:{SWS+3}], 0 offen sc1")
    tk = a(f"buffer_load_dwordx4 {vr(RD+4,4)}, v{SA}, s[{SWS}:{SWS+3}], s{sT[9]} offen sc1")
    a.wait(tk)
    a(f"ds_write_b128 v{SW_}, {vr(RD,4)} offset:{L_ST}\nds_write_b128 v{SW_}, {vr(RD+4,4)} offset:{L_ST+8*192}")
    a.signal(SIG, t[0], 8)
    a.stamp("staged")
    a.flush_stamps(t[0], t[1])
    a("s_waitcnt vmcnt(0) lgkmcnt(0)\ns_endpgm")

def dump_lds(a, base, nbytes, wsoff, vt, vd, stride):
    a(f"s_mul_i32 s3, s2, {stride}\ns_add_u32 s3, s3, {wsoff}\nv_subrev_u32 v{vt}, 256, v0\nv_lshlrev_b32 v{vt}, 4, v{vt}")
    for k in range((nbytes + 4095) // 4096):
        a(f"ds_read_b128 {vr(vd,4)}, v{vt} offset:{base+4096*k}\ns_waitcnt lgkmcnt(0)")
        a(f"buffer_store_dwordx4 {vr(vd,4)}, v{vt}, s[{SWS}:{SWS+3}], s3 offen\ns_add_u32 s3, s3, 4096\ns_waitcnt vmcnt(0)")

def g_main(a, R):
    a.stamp_regs = [6, 8, 10, 12, 14, 16, 18, 90, 92, 94, 96, 98, 100]
    a("L_G:")
    XD = R.alloc("XD", 4); WD = R.alloc("WD", 4); t = [R.alloc(f"t{i}") for i in range(6)]
    sXRW, sWRW, sKX, sKW = sT[0], sT[1], sT[2], sT[3]
    a(f"""s_and_b32 s{sT[4]}, s{sJ}, 1
s_sub_u32 s{sT[5]}, 6, s{sT[4]}
s_mul_i32 s{sSU}, s{sDB}, 3
s_mul_i32 s{sT[4]}, s{sT[4]}, 22
s_add_u32 s{sSU}, s{sSU}, s{sT[4]}
s_cmp_lt_u32 s{sDB}, s{sT[5]}
s_cselect_b32 s{sNT}, 12, 8
s_max_u32 s{sT[4]}, s{sDB}, s{sT[5]}
s_sub_u32 s{sT[4]}, s{sT[4]}, s{sT[5]}
s_sub_u32 s{sSU}, s{sSU}, s{sT[4]}
v_lshrrev_b32 v{t[0]}, 3, v1
v_and_b32 v{t[1]}, 7, v1
v_lshrrev_b32 v{t[2]}, 4, v1
v_xor_b32 v{t[1]}, v{t[1]}, v{t[2]}
s_lshl_b32 s{sT[4]}, s{sRB}, 17
s_lshl_b32 s{sT[5]}, s{sW}, 15
s_add_u32 s{sT[4]}, s{sT[4]}, s{sT[5]}
v_lshlrev_b32 v{t[0]}, 10, v{t[0]}
v_lshl_add_u32 v{t[0]}, v{t[1]}, 4, v{t[0]}
v_add_u32 v{XD}, s{sT[4]}, v{t[0]}
v_xor_b32 v{XD+1}, 64, v{XD}
v_add_u32 v{XD+2}, {2*7168}, v{XD}
v_add_u32 v{XD+3}, {3*7168}, v{XD+1}
v_add_u32 v{XD+1}, 7168, v{XD+1}
s_mul_i32 s{sT[4]}, s{sW}, 192
s_lshl_b32 s{sT[5]}, s{sSU}, 6
s_lshl_b32 s{sXRW}, s{sW}, 14
s_add_u32 s{sXRW}, s{sXRW}, {L_XR}
s_mul_i32 s{sWRW}, s{sW}, 3072
s_add_u32 s{sWRW}, s{sWRW}, {L_WR}
v_mov_b32 v{t[3]}, {OOB}""")
    if OPT["rot"] == 0: a(f"s_mov_b32 s{sROT}, 0")
    elif OPT["rot"] == 1: a(f"s_lshr_b32 s{sROT}, s{sI}, 3\ns_lshl1_add_u32 s{sROT}, s{sROT}, s{sDB}")
    elif OPT["rot"] == 2: a(f"s_lshr_b32 s{sROT}, s{sI}, 3\ns_add_u32 s{sROT}, s{sROT}, s{sDB}\ns_and_b32 s{sROT}, s{sROT}, 1\ns_lshl_b32 s{sROT}, s{sROT}, 2")
    elif OPT["rot"] == 3: a(f"s_lshr_b32 s{sROT}, s{sI}, 3\ns_add_u32 s{sROT}, s{sROT}, s{sDB}\ns_and_b32 s{sROT}, s{sROT}, 3\ns_lshl_b32 s{sROT}, s{sROT}, 1")
    for ii in range(3):
        a(f"""v_add_u32 v{t[0]}, s{sT[4]}, v1
v_mul_u32_u24 v{t[1]}, 43691, v{t[0]}
v_lshrrev_b32 v{t[1]}, 19, v{t[1]}
v_mul_u32_u24 v{t[2]}, 12, v{t[1]}
v_sub_u32 v{t[2]}, v{t[0]}, v{t[2]}
v_mul_u32_u24 v{t[1]}, 2752, v{t[1]}
v_cmp_gt_u32 vcc, s{sNT}, v{t[2]}
v_lshl_add_u32 v{t[1]}, v{t[2]}, 4, v{t[1]}
v_add_u32 v{t[1]}, s{sT[5]}, v{t[1]}
v_cndmask_b32 v{WD+ii}, v{t[3]}, v{t[1]}, vcc""")
        if ii < 2: a(f"s_add_u32 s{sT[4]}, s{sT[4]}, 64\ns_sub_u32 s{sT[5]}, s{sT[5]}, 1024")
    a("s_waitcnt lgkmcnt(0)")
    a.srd(SX, 4, 2097152); a.srd(SW1, 20, 1409024)
    a.stamp("G_begin")
    tX = {}; tW = {}
    def iss_x(c):
        a(f"""s_add_u32 s{sKX}, s{sROT}, {c}
s_and_b32 s{sKX}, s{sKX}, 7
s_mul_i32 s{sKW}, s{sKX}, {64*2752}
s_lshl_b32 s{sKX}, s{sKX}, 7
s_add_u32 m0, s{sXRW}, {(c&3)*4096}""")
        for jj in range(4):
            tX[c] = a(f"buffer_load_dwordx4 v{XD+jj}, s[{SX}:{SX+3}], s{sKX} offen offset:{1024*jj} lds")
    def iss_w(c):
        a(f"s_add_u32 m0, s{sWRW}, {(c&3)*12288}")
        for ii in range(3):
            tW[c] = a(f"buffer_load_dwordx4 v{WD+ii}, s[{SW1}:{SW1+3}], s{sKW} offen offset:{1024*ii} lds")
    iss_x(0); iss_w(0); iss_x(1); iss_w(1)
    a("s_barrier")
    iss_x(2); iss_w(2); iss_x(3); iss_w(3)
    XA = R.alloc("XA", 4); WA = R.alloc("WA", 4); SEL = R.alloc("SEL", 4); Z = R.alloc("Z")
    SIG = R.alloc("SIG"); PR = R.alloc("PR", 4); B1V = R.alloc("B1V"); STA = R.alloc("STA"); STV = R.alloc("STV", 4)
    ACC = R.alloc("ACC", 48); CSA = R.alloc("CSA", 4); FR = [R.alloc(f"FR{i}", 16) for i in range(2)]
    sTILE = [sT[6], sT[7], sT[8]]
    a.srd(SB1, 22, 2752); a.srd(SWS, 32, W_END)
    a(f"""s_cmp_eq_u32 s{sW}, 3
s_cselect_b32 s{sTILE[0]}, 0, s{sW}
s_add_u32 s{sTILE[1]}, s{sTILE[0]}, 1
s_cmp_eq_u32 s{sTILE[1]}, 3
s_cselect_b32 s{sTILE[1]}, 0, s{sTILE[1]}
s_add_u32 s{sTILE[2]}, s{sTILE[1]}, 1
s_cmp_eq_u32 s{sTILE[2]}, 3
s_cselect_b32 s{sTILE[2]}, 0, s{sTILE[2]}
s_add_u32 s{sT[4]}, s{sSU}, s{sTILE[0]}
s_lshl_b32 s{sT[4]}, s{sT[4]}, 6
v_and_b32 v{t[0]}, 31, v1
v_lshlrev_b32 v{t[1]}, 1, v{t[0]}
buffer_load_ushort v{B1V}, v{t[1]}, s[{SB1}:{SB1+3}], s{sT[4]} offen
s_lshl_b32 s{sT[4]}, s{sRB}, 11
s_lshl_b32 s{sT[5]}, s{sW}, 9
s_add_u32 s{sT[4]}, s{sT[4]}, s{sT[5]}
s_add_u32 s{sT[4]}, s{sT[4]}, {W_ST}
v_lshl_add_u32 v{STA}, v{t[0]}, 4, s{sT[4]}
v_lshrrev_b32 v{t[1]}, 5, v1
v_bfe_u32 v{t[2]}, v1, 1, 3
v_xor_b32 v{t[2]}, v{t[2]}, v{t[1]}
v_lshlrev_b32 v{t[0]}, 7, v{t[0]}
v_lshl_add_u32 v{t[0]}, v{t[2]}, 4, v{t[0]}
v_add_u32 v{XA}, s{sXRW}, v{t[0]}
v_xor_b32 v{XA+1}, 32, v{XA}
v_xor_b32 v{XA+2}, 64, v{XA}
v_xor_b32 v{XA+3}, 0x60, v{XA}
v_bfe_u32 v{t[0]}, v1, 2, 2
v_lshl_add_u32 v{t[0]}, v{t[1]}, 3, v{t[0]}
v_mul_u32_u24 v{t[0]}, 192, v{t[0]}
v_bfe_u32 v{t[2]}, v1, 4, 1
v_lshl_add_u32 v{t[0]}, v{t[2]}, 5, v{t[0]}
v_and_b32 v{t[3]}, 3, v1
v_lshl_add_u32 v{t[0]}, v{t[3]}, 3, v{t[0]}
v_add_u32 v{t[0]}, {L_WR}, v{t[0]}""")
    for k in range(3):
        a(f"s_lshl_b32 s{sT[4]}, s{sTILE[k]}, 6\nv_add_u32 v{WA+k}, s{sT[4]}, v{t[0]}")
    a(f"""v_and_b32 v{t[0]}, 15, v1
v_cmp_eq_u32 vcc, v{t[0]}, v{t[2]}
v_mov_b32 v{t[1]}, 0x3f803f80
v_mov_b32 v{Z}, 0
v_cndmask_b32 v{SEL}, 0, v{t[1]}, vcc
v_cndmask_b32 v{SEL+1}, 0, v{t[1]}, vcc
v_cndmask_b32 v{SEL+2}, 0, v{t[1]}, vcc
v_cndmask_b32 v{SEL+3}, 0, v{t[1]}, vcc
s_lshl_b32 s{sT[4]}, s{sW}, 2
v_lshlrev_b32 v{SIG}, 2, v1
v_add_u32 v{SIG}, {L_DUM}, v{SIG}
v_writelane_b32 v{SIG}, s{sT[4]}, 0""")
    def reads(c, ks):
        b = FR[(4*c+ks) & 1]
        a(f"ds_read_b128 {vr(b,4)}, v{XA+ks} offset:{(c&3)*4096}")
        for k in range(3):
            for h2 in range(2):
                tk = a(f"ds_read_b64_tr_b16 {vr(b+4+4*k+2*h2,2)}, v{WA+k} offset:{(c&3)*12288+ks*3072+h2*768}")
        return tk
    a.wait(tW[0])
    a.signal(SIG, t[0], 1)
    a.sync_wait(PR, Z, L_GP, 1)
    a.stamp("c0_ready")
    tk = reads(0, 0)
    tST = None
    for c in range(8):
        for ks in range(4):
            b = FR[(4*c+ks) & 1]
            if ks == 0 and 1 <= c <= 4: iss_x(c+3)
            if ks == 3 and c < 7:
                a.prog_check(tp, PR, Z, L_GP, c+2)
                if 1 <= c <= 4: iss_w(c+3)
            nxt = None
            if (c, ks) != (7, 3):
                nxt = reads(c, ks+1) if ks < 3 else reads(c+1, 0)
            a.wait(tk)
            first = (c == 0 and ks == 0)
            for k in range(3):
                a(f"v_mfma_f32_32x32x16_bf16 {vr(ACC+16*k,16)}, {vr(b+4+4*k,4)}, {vr(b,4)}, {0 if first else vr(ACC+16*k,16)}")
                if k == 0:
                    a(f"v_mfma_f32_16x16x32_bf16 {vr(CSA,4)}, {vr(b+4,4)}, {vr(SEL,4)}, {0 if first else vr(CSA,4)}")
            tk = nxt
            if ks == 0 and c < 7:
                a.wait(tW[c+1])
                a.signal(SIG, t[0], c+2)
            if ks == 1 and c < 7:
                tp = a.prog_read(PR, Z, L_GP)
            if (c, ks) == (5, 3):
                tST = a(f"buffer_load_dwordx4 {vr(STV,4)}, v{STA}, s[{SWS}:{SWS+3}], 0 offen sc1")
        if c in (1, 3, 5): a.stamp(f"c{c}_done")
    a.stamp("G1_done")
    R.release("XD", "WD", "XA", "WA", "SEL", "FR0", "FR1")
    TG = R.alloc("TG", 4)
    tsp = a.prog_read(PR, Z, L_SP)
    sRHO, sKAP = sT[9], sT[10]
    W2D = R.alloc("W2D", 2)
    a(f"""s_lshl_b32 s{sT[4]}, s{sTILE[0]}, 7
v_and_b32 v{t[0]}, 15, v1
v_lshrrev_b32 v{t[1]}, 4, v1
v_lshlrev_b32 v{t[1]}, 4, v{t[1]}
v_lshl_add_u32 v{t[1]}, v{t[0]}, 6, v{t[1]}
v_add_u32 v{t[1]}, s{sT[4]}, v{t[1]}
v_and_b32 v{t[2]}, 31, v1
v_lshl_add_u32 v{t[2]}, v{t[2]}, 2, s{sT[4]}
v_lshlrev_b32 v{B1V}, 16, v{B1V}
s_mov_b32 exec_lo, 0x00030003
s_mov_b32 exec_hi, 0x00030003
ds_write_b128 v{t[1]}, {vr(CSA,4)} offset:{L_CST}
s_mov_b64 exec, -1
ds_write_b32 v{t[2]}, v{B1V} offset:{L_B1}""")
    a.signal(SIG, t[0], 9)
    a.srd(SW2, 24, 1409024)
    a(f"""s_and_b32 s{sRHO}, s{sW}, 1
s_lshr_b32 s{sKAP}, s{sW}, 1
v_lshrrev_b32 v{t[0]}, 3, v1
v_and_b32 v{t[1]}, 7, v1
v_bfe_u32 v{t[2]}, v1, 4, 1
v_lshlrev_b32 v{t[2]}, 2, v{t[2]}
v_xor_b32 v{t[1]}, v{t[1]}, v{t[2]}
v_lshlrev_b32 v{t[0]}, 10, v{t[0]}
v_lshl_add_u32 v{t[0]}, v{t[1]}, 4, v{t[0]}
s_mul_i32 s{sT[4]}, s{sKAP}, {688*1024}
s_lshl_b32 s{sT[5]}, s{sRHO}, 13
s_add_u32 s{sT[4]}, s{sT[4]}, s{sT[5]}
s_lshl_b32 s{sT[5]}, s{sDB}, 7
s_add_u32 s{sT[4]}, s{sT[4]}, s{sT[5]}
v_add_u32 v{W2D}, s{sT[4]}, v{t[0]}
v_add_u32 v{W2D+1}, {16384-2048}, v{W2D}
s_mul_i32 s{sT[0]}, s{sKAP}, {W2_HALF}
s_lshl_b32 s{sT[5]}, s{sRHO}, 10
s_add_u32 s{sT[0]}, s{sT[0]}, s{sT[5]}
s_add_u32 s{sT[0]}, s{sT[0]}, {L_W2}""")
    sW2M = sT[0]
    a.prog_check(tsp, PR, Z, L_SP, 1)
    a(f"ds_read_b128 {vr(TG,4)}, v{Z} offset:32\ns_waitcnt lgkmcnt(0)\nv_readfirstlane_b32 s{sTAG}, v{TG+3}")
    a.sync_wait(PR, Z, L_GP, 9)
    tW2 = {}
    def iss_w2(ks0, n):
        slot = ks0 if ks0 < 28 else ks0 - 28
        a(f"s_add_u32 m0, s{sW2M}, {slot*2048}\ns_mov_b32 s{sT[1]}, {ks0*16384}")
        for k in range(n):
            tW2[ks0+k] = a(f"buffer_load_dwordx4 v{W2D+k}, s[{SW2}:{SW2+3}], s{sT[1]} offen offset:{2048*k} lds")
    a.poll_check(tST, [STV+1, STV+3], f"buffer_load_dwordx4 {vr(STV,4)}, v{STA}, s[{SWS}:{SWS+3}], 0 offen sc1")
    a.stamp("stats_ok")
    for k in range(0, 10, 2): iss_w2(k, 2)
    R.release("TG", "CSA", "B1V", "STA")
    TB = R.alloc("TB"); CB = [R.alloc(f"CB{i}", 8) for i in range(2)]
    V2 = R.alloc("V2", 4); KC3 = R.alloc("KC3", 2); HO = R.alloc("HO", 16); HA = R.alloc("HA")
    k1 = -2*math.sqrt(2/math.pi)*LOG2E
    a(f"""s_mov_b32 s{sT[2]}, {f2u(k1)}
v_mov_b32 v{KC3}, {f2u(k1*0.044715)}
v_lshrrev_b32 v{t[0]}, 5, v1
v_lshlrev_b32 v{t[0]}, 4, v{t[0]}
s_lshl2_add_u32 s{sT[11]}, s{sRB}, s{sW}
s_mul_i32 s{sT[11]}, s{sT[11]}, {86*1024}
s_add_u32 s{sT[11]}, s{sT[11]}, {W_H}
v_lshlrev_b32 v{HA}, 4, v1""")
    TBk = [t[1], t[2], t[3]]
    for k in range(3):
        a(f"s_lshl_b32 s{sT[4]}, s{sTILE[k]}, 7\nv_add_u32 v{TBk[k]}, s{sT[4]}, v{t[0]}")
    def rd_tab(n):
        k, q = divmod(n, 4)
        a(f"ds_read_b128 {vr(CB[n&1],4)}, v{TBk[k]} offset:{L_CST+32*q}")
        return a(f"ds_read_b128 {vr(CB[n&1]+4,4)}, v{TBk[k]} offset:{L_B1+32*q}")
    tt = rd_tab(0)
    tH = None
    for n in range(12):
        k, q = divmod(n, 4)
        cb = CB[n & 1]; ac = ACC + 16*k + 4*q
        nx = rd_tab(n+1) if n < 11 else None
        a.wait(tt); tt = nx
        for p in range(2):
            a(f"v_pk_fma_f32 {vr(cb+2*p,2)}, {vr(cb+2*p,2)}, {vr(STV+2,2)}, {vr(cb+4+2*p,2)} op_sel_hi:[1,0,1] neg_lo:[0,1,0] neg_hi:[0,1,0]")
        for p in range(2):
            a(f"v_pk_fma_f32 {vr(ac+2*p,2)}, {vr(ac+2*p,2)}, {vr(STV,2)}, {vr(cb+2*p,2)} op_sel_hi:[1,0,1]")
        for p in range(2):
            a(f"v_pk_mul_f32 {vr(V2+2*p,2)}, {vr(ac+2*p,2)}, {vr(ac+2*p,2)}")
        for p in range(2):
            a(f"v_pk_fma_f32 {vr(V2+2*p,2)}, {vr(V2+2*p,2)}, {vr(KC3,2)}, s[{sT[2]}:{sT[2]+1}] op_sel_hi:[1,0,0]")
        for p in range(2):
            a(f"v_pk_mul_f32 {vr(V2+2*p,2)}, {vr(V2+2*p,2)}, {vr(ac+2*p,2)}")
        for e in range(4): a(f"v_exp_f32 v{V2+e}, v{V2+e}")
        for p in range(2):
            a(f"v_pk_add_f32 {vr(V2+2*p,2)}, {vr(V2+2*p,2)}, 1.0 op_sel_hi:[1,0]")
        for e in range(4): a(f"v_rcp_f32 v{V2+e}, v{V2+e}")
        for p in range(2):
            a(f"v_pk_mul_f32 {vr(V2+2*p,2)}, {vr(V2+2*p,2)}, {vr(ac+2*p,2)}")
        ho = HO + 8*(k & 1) + 2*q
        for p in range(2): a(f"v_cvt_pk_bf16_f32 v{ho+p}, v{V2+2*p}, v{V2+2*p+1}")
        if q == 1:
            a(f"""s_add_u32 s{sT[4]}, s{sSU}, s{sTILE[k]}
s_lshl_b32 s{sT[4]}, s{sT[4]}, 11
s_add_u32 s{sT[4]}, s{sT[4]}, s{sT[11]}
s_lshl_b32 s{sT[5]}, s{sTILE[k]}, 2
s_cmp_lt_u32 s{sT[5]}, s{sNT}
s_cselect_b32 s{sT[4]}, s{sT[4]}, {OOB}""")
        if q & 1:
            tH = a(f"buffer_store_dwordx4 {vr(HO+8*(k&1)+4*(q>>1),4)}, v{HA}, s[{SWS}:{SWS+3}], s{sT[4]} offen offset:{1024*(q>>1)} sc1")
    a.stamp("gelu_done")
    for k in range(10, 20, 2): iss_w2(k, 2)
    R.release("TB", "CB0", "CB1", "V2", "KC3", "ACC", "STV")
    CTR = R.alloc("CTR"); ONE = R.alloc("ONE"); A0 = R.alloc("A0", 2); FLA = R.alloc("FLA"); FL = R.alloc("FL")
    B2 = R.alloc("B2", 8)
    a(f"""v_mov_b32 v{CTR}, v{SIG}
v_mov_b32 v{ONE}, 1
v_writelane_b32 v{CTR}, {L_CH}, 0
s_lshl4_add_u32 s{sT[4]}, s{sRB}, s{sCB}
s_lshl_b32 s{sT[4]}, s{sT[4]}, 7
s_add_u32 s{sT[4]}, s{sT[4]}, {W_FH}
s_lshr_b32 s{sT[5]}, s{sLB}, 1
s_lshl_b32 s{sT[5]}, s{sT[5]}, 11
s_add_u32 s{sT[5]}, s{sT[5]}, {W_FH}
v_and_b32 v{t[0]}, 15, v1
v_lshl_add_u32 v{FLA}, v{t[0]}, 7, s{sT[5]}
v_bfe_u32 v{t[0]}, v1, 2, 2
v_lshrrev_b32 v{t[1]}, 5, v1
v_lshl_add_u32 v{t[2]}, v{t[1]}, 2, v{t[0]}
v_lshlrev_b32 v{t[2]}, 7, v{t[2]}
v_lshrrev_b32 v{t[0]}, 1, v{t[0]}
v_xor_b32 v{t[0]}, s{sKAP}, v{t[0]}
v_lshl_add_u32 v{t[2]}, v{t[0]}, 6, v{t[2]}
v_bfe_u32 v{t[0]}, v1, 4, 1
v_lshl_add_u32 v{t[2]}, v{t[0]}, 5, v{t[2]}
v_and_b32 v{t[0]}, 3, v1
v_lshl_add_u32 v{t[2]}, v{t[0]}, 3, v{t[2]}
s_mul_i32 s{sT[5]}, s{sKAP}, {W2_HALF}
s_add_u32 s{sT[5]}, s{sT[5]}, {L_W2}
v_add_u32 v{A0}, s{sT[5]}, v{t[2]}
v_xor_b32 v{A0+1}, 64, v{A0}
s_lshl_b32 s{sT[5]}, s{sDB}, 7
s_lshl_b32 s{sT[2]}, s{sKAP}, 6
s_add_u32 s{sT[5]}, s{sT[5]}, s{sT[2]}
v_lshl_add_u32 v{t[3]}, v{t[1]}, 3, s{sT[5]}
s_lshl1_add_u32 s{sT[11]}, s{sLB}, s{sRHO}
s_mul_i32 s{sT[11]}, s{sT[11]}, 86
s_mul_i32 s{sT[5]}, s{sKAP}, 43
s_add_u32 s{sT[11]}, s{sT[11]}, s{sT[5]}
s_lshl_b32 s{sT[11]}, s{sT[11]}, 10
s_add_u32 s{sT[11]}, s{sT[11]}, {W_H}""")
    a.wait(tH)
    a.arrive_publish(CTR, ONE, t[0], t[1], sT[4])
    R.release("HO")
    a.stamp("h_pub")
    for k in range(20, 28, 2): iss_w2(k, 2)
    for q in range(4): a(f"global_load_dwordx2 {vr(B2+2*q,2)}, v{t[3]}, s[26:27] offset:{16*q}")
    PK = R.alloc("PK", 120); HR = R.alloc("HR", 48); WF = [R.alloc(f"WF{i}", 8) for i in range(2)]
    OA = R.alloc("OA", 32)
    def rd_w2(ks, dst):
        slot = ks if ks < 28 else ks - 28
        for dt in range(2):
            for h2 in range(2):
                tk = a(f"ds_read_b64_tr_b16 {vr(dst+4*dt+2*h2,2)}, v{A0+dt} offset:{slot*2048+h2*1024}")
        return tk
    a.wait(tW2[14])
    a.signal(SIG, t[0], 10)
    a.sync_wait(PR, Z, L_GP, 10)
    for ks in range(15): tk = rd_w2(ks, PK + 8*ks)
    a.signal(SIG, t[0], 11)
    a.sync_wait(PR, Z, L_GP, 11)
    a.stamp("parked")
    rl = f"global_load_dword v{FL}, v{FLA}, s[32:33] sc1"
    tF = a(rl)
    for k in range(28, 42, 2): iss_w2(k, 2)
    iss_w2(42, 1)
    a.poll_check(tF, [FL], rl)
    a.stamp("h_seen")
    tHL = {}
    def iss_h(ks):
        if ks % 4 == 0 and ks: a(f"s_add_u32 s{sT[11]}, s{sT[11]}, 4096")
        tHL[ks] = a(f"buffer_load_dwordx4 {vr(HR+4*(ks%12),4)}, v{HA}, s[{SWS}:{SWS+3}], s{sT[11]} offen offset:{1024*(ks%4)} sc1")
    for ks in range(12): iss_h(ks)
    tk = None
    for ks in range(43):
        if ks == 12: tp = a.prog_read(PR, Z, L_GP)
        if ks == 14: a.prog_check(tp, PR, Z, L_GP, 12)
        nxt = None
        if 14 <= ks < 42: nxt = rd_w2(ks+1, WF[(ks+1) & 1])
        a.wait(tHL[ks], tk)
        if ks == 0: a.signal(SIG, t[0], 12)
        src = PK + 8*ks if ks < 15 else WF[ks & 1]
        for dt in range(2):
            a(f"v_mfma_f32_32x32x16_bf16 {vr(OA+16*dt,16)}, {vr(src+4*dt,4)}, {vr(HR+4*(ks%12),4)}, {0 if ks == 0 else vr(OA+16*dt,16)}")
        tk = nxt
        if ks + 12 < 43: iss_h(ks + 12)
        if ks == 40: tsp = a.prog_read(PR, Z, L_SP)
    a.stamp("G2_done")
    R.release("PK", "HR", "WF0", "WF1", "A0", "FLA", "FL", "W2D", "HA")
    RD = R.alloc("RD", 16); SV = R.alloc("SV", 8); XV = R.alloc("XV", 8); XA = R.alloc("XA2", 4)
    U = R.alloc("U", 4); E = R.alloc("E", 4); RB_ = R.alloc("RB_"); OO = R.alloc("OO", 2)
    EXW, EXR, STA = t[0], t[1], t[2]
    a.srd(SOUT, 28, 2097152)
    a(f"""s_lshl_b32 s{sT[4]}, s{sW}, 12
s_add_u32 s{sT[4]}, s{sT[4]}, {L_EX}
v_lshl_add_u32 v{EXW}, v1, 4, s{sT[4]}
s_xor_b32 s{sT[4]}, s{sW}, 2
s_lshl_b32 s{sT[4]}, s{sT[4]}, 12
s_add_u32 s{sT[4]}, s{sT[4]}, {L_EX}
v_lshl_add_u32 v{EXR}, v1, 4, s{sT[4]}
v_bfe_u32 v{t[3]}, v1, 2, 2
v_lshrrev_b32 v{t[4]}, 5, v1
v_lshl_add_u32 v{t[3]}, v{t[4]}, 2, v{t[3]}
v_mul_u32_u24 v{t[3]}, 192, v{t[3]}
v_bfe_u32 v{t[5]}, v1, 4, 1
v_lshl_add_u32 v{t[3]}, v{t[5]}, 5, v{t[3]}
v_and_b32 v{t[5]}, 3, v1
v_lshl_add_u32 v{t[3]}, v{t[5]}, 3, v{t[3]}
s_mul_i32 s{sT[4]}, s{sKAP}, {32*192}
s_lshl_b32 s{sT[5]}, s{sRHO}, 6
s_add_u32 s{sT[4]}, s{sT[4]}, s{sT[5]}
v_add_u32 v{STA}, s{sT[4]}, v{t[3]}
s_lshl_b32 s{sT[4]}, s{sKAP}, 2
s_lshl_b32 s{sT[5]}, s{sRHO}, 12
s_add_u32 s{sT[5]}, s{sT[5]}, {L_XO}
v_bfe_u32 v{t[3]}, v1, 1, 3
v_xor_b32 v{t[3]}, s{sT[4]}, v{t[3]}
v_lshlrev_b32 v{t[3]}, 4, v{t[3]}
v_lshl_add_u32 v{t[3]}, v{t[4]}, 3, v{t[3]}
v_and_b32 v{t[4]}, 31, v1
v_lshl_add_u32 v{t[3]}, v{t[4]}, 7, v{t[3]}
v_add_u32 v{XA}, s{sT[5]}, v{t[3]}
v_xor_b32 v{XA+1}, 16, v{XA}
v_xor_b32 v{XA+2}, 32, v{XA}
v_xor_b32 v{XA+3}, 48, v{XA}
v_or_b32 v{t[5]}, s{sT[4]}, v{t[5]}
v_lshrrev_b32 v{t[3]}, 3, v1
v_xor_b32 v{t[3]}, v{t[3]}, v{t[5]}
v_lshrrev_b32 v{t[4]}, 2, v1
v_lshlrev_b32 v{RB_}, 7, v{t[4]}
v_lshl_add_u32 v{RB_}, v{t[3]}, 4, v{RB_}
v_add_u32 v{RB_}, s{sT[5]}, v{RB_}
s_lshl_b32 s{sT[4]}, s{sLB}, 16
s_lshl_b32 s{sT[5]}, s{sRHO}, 15
s_add_u32 s{sT[4]}, s{sT[4]}, s{sT[5]}
s_lshl_b32 s{sT[5]}, s{sDB}, 7
s_add_u32 s{sT[4]}, s{sT[4]}, s{sT[5]}
v_lshlrev_b32 v{t[4]}, 10, v{t[4]}
v_lshl_add_u32 v{t[4]}, v{t[5]}, 4, v{t[4]}
v_add_u32 v{t[4]}, s{sT[4]}, v{t[4]}
s_mov_b32 s{sT[2]}, {f2u(-LOG2E)}
s_mov_b32 s{sT[4]}, 0xffff0000
s_mov_b32 s{sT[5]}, 16384""")
    OUTA = t[4]
    a.prog_check(tsp, PR, Z, L_SP, 8)
    a.stamp("staged_ok")
    for k in range(4): a(f"ds_write_b128 v{EXW}, {vr(OA+16+4*k,4)} offset:{1024*k}")
    a.signal(SIG, t[3], 13)
    tp = a.prog_read(PR, Z, L_GP)
    for q in range(4):
        a(f"ds_read_b64_tr_b16 {vr(SV+2*q,2)}, v{STA} offset:{L_ST+1536*q}")
        a(f"ds_read_b64 {vr(XV+2*q,2)}, v{XA+q}")
    a.prog_check(tp, PR, Z, L_GP, 13)
    tk = [a(f"ds_read_b128 {vr(RD+4*k,4)}, v{EXR} offset:{1024*k}") for k in range(4)]
    def unpack(dst, src):
        a(f"""v_lshlrev_b32 v{dst}, 16, v{src}
v_and_b32 v{dst+1}, s{sT[4]}, v{src}
v_lshlrev_b32 v{dst+2}, 16, v{src+1}
v_and_b32 v{dst+3}, s{sT[4]}, v{src+1}""")
    for q in range(4):
        o = OA + 4*q
        unpack(U, B2 + 2*q)
        for p in range(2): a(f"v_pk_add_f32 {vr(o+2*p,2)}, {vr(o+2*p,2)}, {vr(U+2*p,2)}")
        a.wait(tk[q])
        for p in range(2): a(f"v_pk_add_f32 {vr(o+2*p,2)}, {vr(o+2*p,2)}, {vr(RD+4*q+2*p,2)}")
        for p in range(2): a(f"v_pk_mul_f32 {vr(E+2*p,2)}, {vr(o+2*p,2)}, s[{sT[2]}:{sT[2]+1}] op_sel_hi:[1,0]")
        for e in range(4): a(f"v_exp_f32 v{E+e}, v{E+e}")
        unpack(U, SV + 2*q)
        for p in range(2): a(f"v_pk_add_f32 {vr(E+2*p,2)}, {vr(E+2*p,2)}, 1.0 op_sel_hi:[1,0]")
        for e in range(4): a(f"v_rcp_f32 v{E+e}, v{E+e}")
        for p in range(2): a(f"v_pk_mul_f32 {vr(o+2*p,2)}, {vr(o+2*p,2)}, {vr(U+2*p,2)}")
        unpack(U, XV + 2*q)
        for p in range(2): a(f"v_pk_fma_f32 {vr(o+2*p,2)}, {vr(o+2*p,2)}, {vr(E+2*p,2)}, {vr(U+2*p,2)}")
        for p in range(2): a(f"v_cvt_pk_bf16_f32 v{XV+2*q+p}, v{o+2*p}, v{o+2*p+1}")
        a(f"ds_write_b64 v{XA+q}, {vr(XV+2*q,2)}")
    t0 = a(f"ds_read_b128 {vr(RD,4)}, v{RB_}")
    t1 = a(f"ds_read_b128 {vr(RD+4,4)}, v{RB_} offset:2048")
    a.wait(t0)
    a(f"buffer_store_dwordx4 {vr(RD,4)}, v{OUTA}, s[{SOUT}:{SOUT+3}], 0 offen")
    a.wait(t1)
    a(f"buffer_store_dwordx4 {vr(RD+4,4)}, v{OUTA}, s[{SOUT}:{SOUT+3}], s{sT[5]} offen")
    a.stamp("G_end")
    a.flush_stamps(t[0], t[1])
    a("L_end:\ns_endpgm")

def table():
    T = [[0]*12 for _ in range(64)]
    patches = []
    for ch in range(2):
        for s, j, n in ((1,0,0),(2,0,0),(2,1,1),(3,0,0),(3,1,1),(3,2,2),(2,257,256),(3,257,256),(3,258,257),(3,514,384)):
            patches.append((ch*KP_STRIDE + 2*n, L_KC + (4*ch+s)*KC_STRIDE + 2*(j-s+16)))
    for lane in range(64):
        r = lane & 15; g = lane >> 4; b = r
        p0 = (r & 7) + 128*(r >> 3)
        p1 = 256 + 128*(r >> 2) + 2*(r & 3) if r < 8 else 512 + 128*((r-8) >> 1) + 4*(r & 1)
        p2 = 1024 + 128*r if r < 8 else 2048
        T[lane][0:4] = [f2u(p0), f2u(p1), f2u(p2), f2u(8*r)]
        if g < 2: aa = 2*(256 + 64*g + 4*b); ab = aa + 4
        else: aa = 2*(384 + 64*(g-2) + 2*b); ab = aa + 64
        T[lane][4] = aa; T[lane][5] = ab
        T[lane][6] = 2*(128*(g >> 1) + 4*(g & 1) + 8*b)
        T[lane][7] = 2*(512 + 64*g + b) if g < 2 else (2*640 if lane == 32 else 2*641)
        T[lane][8], T[lane][9] = patches[lane] if lane < len(patches) else (0, L_DUM + 4*lane)
    out = []
    for k in range(3):
        for lane in range(64):
            out.append(".long " + ", ".join(hex(v) for v in T[lane][4*k:4*k+4]))
    return out

def build():
    a = K()
    common(a)
    base_vm = a.vm
    RS = Regs(2, 255); RG = Regs(2, 255)
    s_prologue(a, RS)
    sv = (a.vm, a.lg, a.stamp_regs)
    a.vm = base_vm; a.lg = 0
    g_main(a, RG)
    a.vm, a.lg, a.stamp_regs = sv
    s_main(a, RS)
    body, nops = pad_hazards(a.lines)
    ool = []
    for blk in a.ool:
        l, n = pad_hazards(["    " + x.strip() if not x.strip().endswith(":") else x.strip() for x in blk.split("\n")])
        ool += l
    hdr = open("cdna_kernels/" + NAME + ".s.ref").read().split("\n")
    hdr = [h for h in hdr if h.startswith(";") and "@launch" not in h and "Override launch" not in h and "grid=ceil" not in h]
    kn = NAME + "_kernel"
    txt = "\n".join(hdr) + f"""
; One persistent launch: 256 workgroups of 8 waves, one per CU.  Waves 0-3 run the channel MLP
; (two bf16 GEMMs), waves 4-7 the layer norm, the S4D kernel generation and the causal convolution.
; Generated by a hand-written Python script (register allocation, waits and wait states spelled out there).
; @launch grid=(256,1,1) block=(512,1,1) lds={L_TOT}
.amdgcn_target "amdgcn-amd-amdhsa--gfx950"
.text
.globl {kn}
.p2align 8
.type {kn},@function
{kn}:
""" + "\n".join(body) + "\n" + "\n".join(ool) + "\n.p2align 4\n.type L_tab,@object\nL_tab:\n" + "\n".join(table()) + f"""
L_tabend:
.section .rodata,"a"
.p2align 6
.amdhsa_kernel {kn}
  .amdhsa_next_free_vgpr 256
  .amdhsa_next_free_sgpr 102
  .amdhsa_accum_offset 256
  .amdhsa_group_segment_fixed_size 0
  .amdhsa_kernarg_size 120
  .amdhsa_user_sgpr_count 2
  .amdhsa_user_sgpr_kernarg_segment_ptr 1
  .amdhsa_system_sgpr_workgroup_id_x 1
  .amdhsa_float_denorm_mode_32 3
.end_amdhsa_kernel
"""
    return txt, nops

if __name__ == "__main__":
    out = sys.argv[1]
    for kv in sys.argv[2:]:
        k, v = kv.split("="); OPT[k] = int(v)
    txt, nops = build()
    open(out, "w").write(txt)
    if OPT["diag"]:
        import json; json.dump(OPT["stampnames"], open(out + ".stamps.json", "w"))
    print("written", out, "nops", nops)
```
